```python
import torch

def _softmax(x, axis=-1):
    return torch.softmax(x, dim=axis)
def _gelu(x):
    return torch.nn.functional.gelu(x, approximate="tanh")
def _silu(x):
    return torch.nn.functional.silu(x)
def _sigmoid(x):
    return torch.sigmoid(x)
def _layernorm(x, axis=-1, eps=1e-5):
    m = x.mean(dim=axis, keepdim=True)
    v = x.var(dim=axis, keepdim=True, unbiased=False)
    return (x - m) / torch.sqrt(v + eps)
def _scatter_add(tgt, idx, src, axis=0):
    return tgt.clone().index_add_(axis, idx, src)
def _segment_sum(src, seg, n):
    out = torch.zeros((n,) + src.shape[1:], dtype=src.dtype)
    return out.index_add_(0, seg, src)
def _pad(x, pw):
    flat = tuple(v for pair in reversed(pw) for v in pair)
    return torch.nn.functional.pad(x, flat)

kernel_name = 'gather_scatter__hybrid_graph_tf_nagphormer__graph'

def setup_inputs():

    _w = (lambda a: (lambda t: t.to(torch.bfloat16) if t.is_floating_point() else t)(torch.as_tensor(a)))
    N, deg, D = 10000, 16, 128
    E = N * deg
    src = (lambda lo, hi, *s: torch.randint(lo, hi, s))(0, N, E).to(torch.int64)
    dst = (lambda lo, hi, *s: torch.randint(lo, hi, s))(0, N, E).to(torch.int64)
    deg_cnt = torch.bincount(dst, minlength=N).to(float) + 1.0
    sc = 1.0 / D ** 0.5
    return {
        "x": _w((lambda *s: torch.randn(*s, dtype=torch.bfloat16) * 0.1)(N, D)),
        "src": _w(src),
        "dst": _w(dst),
        "deg_inv_sqrt": _w(1.0 / (lambda _x: torch.sqrt(torch.as_tensor(_x)))(deg_cnt)),
        "wq": _w((lambda *s: torch.randn(*s, dtype=torch.bfloat16) * 3.2)(D, D) * sc),
        "wk": _w((lambda *s: torch.randn(*s, dtype=torch.bfloat16) * 3.2)(D, D) * sc),
        "wv": _w((lambda *s: torch.randn(*s, dtype=torch.bfloat16) * 0.1)(D, D) * sc),
        "wo": _w((lambda *s: torch.randn(*s, dtype=torch.bfloat16) * 0.1)(D, D) * sc),
        "w_r": _w((lambda *s: torch.randn(*s, dtype=torch.bfloat16) * 0.1)(D)),
    }

def reference(x, src, dst, deg_inv_sqrt, wq, wk, wv, wo, w_r):
    N, D = x.shape[0], x.shape[1]
    K = 7
    h = x
    toks = [x]
    for _ in range(K):
        msg = h[src] * deg_inv_sqrt[src, None] * deg_inv_sqrt[dst, None]
        h = _segment_sum(msg, dst, N)
        toks.append(h)
    tok = torch.stack(toks, axis=1)
    t = _layernorm(tok, axis=-1)
    q   = torch.einsum('nkd,de->nke', t, wq)
    key = torch.einsum('nkd,de->nke', t, wk)
    v   = torch.einsum('nkd,de->nke', t, wv)
    scale = 1.0 / (D ** 0.5)
    attn = _softmax(torch.einsum('nkd,nld->nkl', q, key) * scale, axis=-1)
    o = torch.einsum('nkl,nld->nkd', attn, v)
    o = tok + torch.einsum('nkd,de->nke', o, wo)
    r = _layernorm(o, axis=-1)
    alpha = _softmax(torch.einsum('nkd,d->nk', r, w_r), axis=-1)
    return torch.einsum('nk,nkd->nd', alpha, o)
```

```python
import re

def split_ops(s):
    out, depth, cur = [], 0, ''
    for ch in s:
        if ch in '[(': depth += 1
        if ch in '])': depth -= 1
        if ch == ',' and depth == 0:
            out.append(cur.strip()); cur = ''
        else:
            cur += ch
    if cur.strip(): out.append(cur.strip())
    return out

_reg = re.compile(r'^(-|\|)?(?:abs\()?([vas])(?:(\d+)|\[(\d+):(\d+)\])\)?\|?$')
def regs(tok):
    tok = tok.strip()
    if tok == 'vcc': return {('s', 106), ('s', 107)}
    if tok == 'vcc_lo': return {('s', 106)}
    if tok == 'vcc_hi': return {('s', 107)}
    if tok == 'exec': return {('s', 126), ('s', 127)}
    if tok == 'exec_lo': return {('s', 126)}
    if tok == 'exec_hi': return {('s', 127)}
    if tok == 'm0': return {('s', 124)}
    m = _reg.match(tok)
    if not m: return set()
    k = m.group(2)
    if m.group(3) is not None:
        return {(k, int(m.group(3)))}
    return {(k, i) for i in range(int(m.group(4)), int(m.group(5)) + 1)}

TRANS = ('v_exp_f32', 'v_log_f32', 'v_rcp_f32', 'v_rsq_f32', 'v_sqrt_f32', 'v_sin_f32', 'v_cos_f32', 'v_rcp_iflag_f32')

class Ins:
    def __init__(self, text):
        self.text = text
        t = text.split(';')[0].strip()
        self.label = None
        self.mn = ''
        self.defs = set(); self.uses = set()
        self.kind = 'other'
        self.target = None
        if t.endswith(':'):
            self.label = t[:-1]; self.kind = 'label'; return
        if not t or t.startswith('.'):
            self.kind = 'dir'; return
        parts = t.split(None, 1)
        mn = parts[0]; self.mn = mn
        rest = parts[1] if len(parts) > 1 else ''
        ops = split_ops(rest)
        mods = ''
        if ops:
            sp = ops[-1].split(None, 1)
            if len(sp) == 2 and not sp[0].endswith('('):
                ops[-1] = sp[0]; mods = sp[1]
        self.ops = ops; self.mods = mods
        R = [regs(o) for o in ops]
        base = re.sub(r'_(e32|e64|dpp|sdwa)$', '', mn)
        self.base = base
        self.dpp = mn.endswith('_dpp') or 'row_' in mods or 'quad_perm' in mods
        if mn.startswith('v_mfma'):
            self.kind = 'mfma'
            self.defs = R[0]; self.A = R[1]; self.B = R[2]; self.C = R[3]
            self.uses = R[1] | R[2] | R[3]
            self.passes = 8 if '32x32' in mn else 4
        elif mn.startswith('v_'):
            self.kind = 'valu'
            self.trans = base in TRANS
            nd = 1
            if base in ('v_add_co_u32', 'v_sub_co_u32', 'v_addc_co_u32', 'v_subb_co_u32', 'v_subrev_co_u32', 'v_mad_u64_u32', 'v_div_scale_f32'): nd = 2
            if base.startswith('v_nop'): nd = 0
            for r in R[:nd]: self.defs |= r
            for r in R[nd:]: self.uses |= r
            if base.startswith(('v_fmac', 'v_dot2c', 'v_mac', 'v_writelane')) or self.dpp or 'UNUSED_PRESERVE' in mods: self.uses |= R[0]
            if base.startswith('v_permlane') and 'swap' in base:
                self.defs = R[0] | R[1]; self.uses = R[0] | R[1]
            if base.startswith('v_cmpx'): self.defs |= regs('exec')
        elif mn.startswith('ds_'):
            self.kind = 'ds'
            if mn.startswith(('ds_read', 'ds_bpermute', 'ds_permute', 'ds_swizzle')) or '_rtn' in mn:
                self.defs = R[0]
                for r in R[1:]: self.uses |= r
                if 'd16' in mn: self.uses |= R[0]
            else:
                for r in R: self.uses |= r
        elif mn.startswith(('buffer_', 'global_', 'flat_')):
            self.kind = 'vmem'
            self.lds = bool(re.search(r'\blds\b', mods)) or '_lds_' in mn
            isload = '_load' in mn
            isatomic = '_atomic' in mn
            if mn.startswith(('buffer_wbl2', 'buffer_inv')):
                pass
            elif isload and not self.lds:
                self.defs = R[0]
                for r in R[1:]: self.uses |= r
                if 'd16' in mn: self.uses |= R[0]
            elif isatomic and re.search(r'\bsc0\b', mods):
                self.defs = R[0]
                for r in R: self.uses |= r
            else:
                for r in R: self.uses |= r
            if self.lds: self.uses |= regs('m0')
            self.widestore = ('_store' in mn) and ('x3' in mn or 'x4' in mn)
            if self.widestore:
                self.sdata = R[0] if mn.startswith('buffer_') else R[1]
        elif mn.startswith('s_'):
            self.kind = 'salu'
            if mn.startswith(('s_cbranch', 's_branch')):
                self.kind = 'branch'; self.target = ops[0]
            elif mn in ('s_nop', 's_waitcnt', 's_barrier', 's_endpgm', 's_sleep', 's_setprio', 's_sethalt'):
                pass
            elif mn.startswith(('s_cmp', 's_bitcmp')):
                for r in R: self.uses |= r
            else:
                self.defs = R[0] if R else set()
                for r in R[1:]: self.uses |= r
                if 'saveexec' in mn: self.defs = self.defs | regs('exec')
    def states(self):
        if self.kind in ('label', 'dir'): return 0
        if self.mn == 's_nop': return int(self.ops[0], 0) + 1
        return 1

def vr(s): return {r for r in s if r[0] in 'va'}
def sr(s): return {r for r in s if r[0] == 's'}

def need(p, c):
    n = 0
    if p.kind == 'valu':
        pv = vr(p.defs); ps = sr(p.defs)
        if c.kind == 'mfma' and pv & c.uses: n = max(n, 2)
        if c.kind == 'mfma' and (ps & regs('exec')): n = max(n, 4)
        if c.kind == 'valu':
            if c.dpp and pv & c.uses: n = max(n, 2)
            if c.dpp and (ps & regs('exec')): n = max(n, 5)
            if c.base.startswith('v_permlane') and pv & c.uses: n = max(n, 2)
            if c.base in ('v_readlane_b32', 'v_readfirstlane_b32') and pv & c.uses: n = max(n, 1)
            if p.trans and (pv & c.uses): n = max(n, 1)
            if ps & c.uses:
                n = max(n, 4 if c.base in ('v_readlane_b32', 'v_writelane_b32', 'v_div_fmas_f32') else 2)
            if (ps & regs('exec')) and c.base in ('v_readlane_b32', 'v_readfirstlane_b32', 'v_writelane_b32'): n = max(n, 4)
            if ('sdwa' in p.mn and 'dst_sel:DWORD' not in p.mods or 'op_sel' in p.mods) and pv & (c.uses | c.defs): n = max(n, 1)
        if c.kind == 'vmem' and ps & c.uses: n = max(n, 5)
        if c.kind in ('salu', 'branch') and (ps & c.uses): n = max(n, 1)
    if p.kind == 'salu':
        if ('s', 124) in p.defs and c.kind == 'vmem' and getattr(c, 'lds', False): n = max(n, 1)
    if p.kind == 'vmem' and getattr(p, 'widestore', False):
        if c.kind in ('valu', 'mfma') and (p.sdata & c.defs): n = max(n, 2)
        elif p.sdata & c.defs: n = max(n, 1)
    if p.kind == 'mfma':
        big = p.passes == 8
        if c.kind == 'mfma':
            if p.defs & c.C:
                if not (p.defs == c.C and p.passes == c.passes): n = max(n, 10 if big else 6)
            if p.defs & (c.A | c.B): n = max(n, 12 if big else 8)
            if (p.defs & c.defs) and not (p.defs & c.C): n = max(n, 10 if big else 6)
        elif c.kind in ('valu', 'ds', 'vmem'):
            if p.defs & (c.uses | c.defs): n = max(n, 12 if big else 8)
            if c.kind == 'valu' and (p.C & c.defs): n = max(n, 7 if big else 3)
    return n

MAXW = 13

class Kern:
    def __init__(self):
        self.ins = []
    def __call__(self, text):
        for line in text.split('\n'):
            line = line.strip()
            if line: self.ins.append(Ins(line))
    def label(self, name): self.ins.append(Ins(name + ':'))
    def finalize(self):
        ins = self.ins
        i = 0
        nadded = 0
        while i < len(ins):
            c = ins[i]
            if c.kind in ('label', 'dir'):
                i += 1; continue
            req = 0
            stack = [(i - 1, 0)]
            seen = {}
            while stack:
                j, d = stack.pop()
                if j < 0 or d >= MAXW: continue
                if seen.get(j, 99) <= d: continue
                seen[j] = d
                p = ins[j]
                if p.kind == 'label':
                    for k, q in enumerate(ins):
                        if q.kind == 'branch' and q.target == p.label:
                            stack.append((k, d))
                    pj = j - 1
                    while pj >= 0 and ins[pj].kind == 'dir': pj -= 1
                    if pj >= 0 and ins[pj].mn not in ('s_branch', 's_endpgm'):
                        stack.append((pj, d))
                    continue
                if p.kind == 'dir':
                    stack.append((j - 1, d)); continue
                req = max(req, need(p, c) - d)
                pj = j - 1
                if pj >= 0 and not (ins[pj].mn in ('s_branch', 's_endpgm')):
                    stack.append((pj, d + p.states()))
            if req > 0:
                ins.insert(i, Ins('s_nop %d' % (req - 1)))
                nadded += 1
                i += 1
            i += 1
        return nadded
    def text(self):
        out = []
        for x in self.ins:
            out.append(x.text if x.kind == 'label' else '    ' + x.text)
        return '\n'.join(out)

class RegAlloc:
    def __init__(self, start=0, limit=256, kind='v'):
        self.n = start; self.limit = limit; self.kind = kind; self.names = {}
    def alloc(self, cnt=1, align=1, name=None):
        while self.n % align: self.n += 1
        b = self.n; self.n += cnt
        assert self.n <= self.limit, ('out of regs', self.kind, self.n, name)
        return b

def V(b, n=1): return 'v%d' % b if n == 1 else 'v[%d:%d]' % (b, b + n - 1)
def A(b, n=1): return 'a%d' % b if n == 1 else 'a[%d:%d]' % (b, b + n - 1)
def S(b, n=1): return 's%d' % b if n == 1 else 's[%d:%d]' % (b, b + n - 1)
```

```python
import sys
from asmlib import *

NAME = 'gather_scatter__hybrid_graph_tf_nagphormer__graph'
N = 10000
HOPF = 0
BLDF = 32768
XCCF = 65536
ZERO_BYTES = 66560
STAT = 69632
WFR  = 73728
WFR_BYTES = 73728
CELL = 1 << 20
GOFF = 2 << 20
QS = 81920
GSZ = 32 * QS
NGBUF = 10
ELL = GOFF + NGBUF * GSZ
ELLB = 25600
HOFF = ELL + 256 * ELLB
HSZ = 2560000
WS_END = HOFF + 7 * HSZ
CAP = 40
EPS = 1e-5

import struct
def f2u(x): return struct.unpack('<I', struct.pack('<f', x))[0]
def hx(x): return '0x%08x' % (x & 0xffffffff)

def srd(k, s, base, off, nrec):
    if off == 0:
        k('s_mov_b32 s%d, s%d' % (s, base)); k('s_mov_b32 s%d, s%d' % (s + 1, base + 1))
    else:
        o = off if isinstance(off, str) else hx(off)
        k('s_add_u32 s%d, s%d, %s' % (s, base, o)); k('s_addc_u32 s%d, s%d, 0' % (s + 1, base + 1))
    k('s_mov_b32 s%d, %s' % (s + 2, hx(nrec))); k('s_mov_b32 s%d, 0x20000' % (s + 3))

def desc(name, vgpr, sgpr, accum):
    return f""".amdhsa_kernel {name}
  .amdhsa_next_free_vgpr {vgpr}
  .amdhsa_next_free_sgpr {sgpr}
  .amdhsa_accum_offset {accum}
  .amdhsa_group_segment_fixed_size 0
  .amdhsa_kernarg_size 96
  .amdhsa_user_sgpr_count 2
  .amdhsa_user_sgpr_kernarg_segment_ptr 1
  .amdhsa_system_sgpr_workgroup_id_x 1
.end_amdhsa_kernel"""

def allreduce16(k, op, v):
    for m in ('quad_perm:[1,0,3,2]', 'quad_perm:[2,3,0,1]', 'row_half_mirror', 'row_mirror'):
        k(f'{op}_dpp v{v}, v{v}, v{v} {m} row_mask:0xf bank_mask:0xf')

def allreduce8(k, op, v):
    for m in ('quad_perm:[1,0,3,2]', 'quad_perm:[2,3,0,1]', 'row_half_mirror'):
        k(f'{op}_dpp v{v}, v{v}, v{v} {m} row_mask:0xf bank_mask:0xf')

def xrow_reduce(k, op, v, t):
    k(f'v_mov_b32 v{t}, v{v}'); k(f'v_permlane16_swap_b32 v{v}, v{t}'); k(f'{op} v{v}, v{v}, v{t}')
    k(f'v_mov_b32 v{t}, v{v}'); k(f'v_permlane32_swap_b32 v{v}, v{t}'); k(f'{op} v{v}, v{v}, v{t}')


STMP = 240 << 20
class Stamper:
    def __init__(self, k, on, v, s, kid):
        self.k, self.on, self.v, self.s, self.kid = k, on, v, s, kid
    def init(self):
        if self.on: self.k(f'v_mov_b32 v{self.v}, 0')
    def __call__(self, idx):
        if not self.on: return
        k, s = self.k, self.s
        k(f's_memrealtime s[{s}:{s+1}]'); k('s_waitcnt lgkmcnt(0)')
        k(f'v_writelane_b32 v{self.v}, s{s}, {idx}')
    def flush(self, wsreg, wave, tmpv):
        if not self.on: return
        k, s = self.k, self.s
        k('s_mov_b64 exec, -1')
        k(f's_lshl_b32 s{s}, s2, 4'); k(f's_add_u32 s{s}, s{s}, s{wave}'); k(f's_lshl_b32 s{s}, s{s}, 8')
        k(f's_add_u32 s{s}, s{s}, {STMP + self.kid * (1 << 20)}')
        k(f's_add_u32 s{s+2}, s{wsreg}, s{s}'); k(f's_addc_u32 s{s+3}, s{wsreg+1}, 0')
        k(f'v_mbcnt_lo_u32_b32 v{tmpv}, -1, 0'); k(f'v_mbcnt_hi_u32_b32 v{tmpv}, -1, v{tmpv}'); k(f'v_lshlrev_b32 v{tmpv}, 2, v{tmpv}')
        k(f'global_store_dword v{tmpv}, v{self.v}, s[{s+2}:{s+3}]')
```

```python
from common import *
import math

NPROD = 64
NTR = 157
W_M = NPROD + NTR
W_W = W_M + 1
W_Z = W_W + 1
K1_GRID = W_Z + 1
K1_LDS = 40960
SCALE = 1.4426950408889634 / math.sqrt(128.0)

def gen_k1(opts):
    k = Kern()
    sWS = 4
    k(f's_cmp_ge_u32 s2, {K1_GRID}'); k('s_cbranch_scc1 K1_END')
    st = Stamper(k, int(opts.get('stamp', 0)), 127, 48, 0)
    st.init(); st(0)
    k('s_load_dwordx2 s[4:5], s[0:1], 88')
    def fin():
        if st.on:
            k('s_waitcnt vmcnt(0)'); st(9); st.flush(4, 6, 1)
        k('s_endpgm')
    vLane, vT0, vT1, vT2, vQ, vG = 1, 2, 3, 4, 5, 6
    sWave = 6
    k(f'v_lshrrev_b32 v{vT0}, 6, v0'); k(f'v_and_b32 v{vLane}, 63, v0')
    k(f'v_readfirstlane_b32 s{sWave}, v{vT0}')
    k(f's_cmp_lt_u32 s2, {NPROD}'); k('s_cbranch_scc1 K1_PROD')
    k(f's_cmp_lt_u32 s2, {W_M}'); k('s_cbranch_scc1 K1_TR')
    k(f's_cmp_lt_u32 s2, {W_Z}'); k('s_cbranch_scc1 K1_WT')
    k('s_waitcnt lgkmcnt(0)')
    srd(k, 8, sWS, 0, ZERO_BYTES)
    k('v_lshlrev_b32 v2, 4, v0')
    for i in range(4): k(f'v_mov_b32 v{8+i}, 0')
    for i in range(5):
        k(f's_mov_b32 s12, {16384*i}')
        k('buffer_store_dwordx4 v[8:11], v2, s[8:11], s12 offen')
    fin()

    k.label('K1_PROD')
    k('s_load_dwordx4 s[16:19], s[0:1], 8')
    sS, sD, sC = 8, 12, 20
    vOff, vD, vS, vB, vE, vPos = 8, 12, 16, 20, 24, 28
    IMG, CNT = 0, 16384
    k(f'v_lshlrev_b32 v{vOff}, 4, v0')
    k(f's_mul_i32 s3, s2, 10000')
    for i in range(4): k(f'v_mov_b32 v{32+i}, -1')
    k(f'ds_write_b128 v{vOff}, v[32:35]')
    k('v_mov_b32 v36, 0'); k(f'v_lshlrev_b32 v37, 2, v0')
    k('v_cmp_gt_u32 vcc, 33, v0'); k('s_and_saveexec_b64 s[24:25], vcc')
    k(f'ds_write_b32 v37, v36 offset:{CNT}')
    k('s_mov_b64 exec, s[24:25]')
    k('s_waitcnt lgkmcnt(0)')
    srd(k, sS, 16, 0, 640000); srd(k, sD, 18, 0, 640000); srd(k, sC, sWS, 0, CELL + 64 * 16384)
    k('v_cmp_gt_u32 vcc, 625, v0'); k('s_and_saveexec_b64 s[24:25], vcc')
    k('s_cbranch_execz K1_P_NOLD')
    k(f'buffer_load_dwordx4 v[{vD}:{vD+3}], v{vOff}, s[{sD}:{sD+3}], s3 offen')
    k(f'buffer_load_dwordx4 v[{vS}:{vS+3}], v{vOff}, s[{sS}:{sS+3}], s3 offen')
    k.label('K1_P_NOLD')
    k('s_barrier')
    k('s_cbranch_execz K1_P_SKIP')
    k('v_mov_b32 v36, 1')
    st(1)
    k('s_waitcnt vmcnt(1)')
    st(2)
    for e in range(4):
        k(f'v_mul_u32_u24 v{vB+e}, 52429, v{vD+e}'); k(f'v_lshrrev_b32 v{vB+e}, 24, v{vB+e}')
        k(f'v_lshlrev_b32 v37, 2, v{vB+e}')
        k(f'ds_add_rtn_u32 v{vPos+e}, v37, v36 offset:{CNT}')
        k(f'v_mul_u32_u24 v38, 320, v{vB+e}'); k(f'v_sub_u32 v{vD+e}, v{vD+e}, v38')
    k('s_waitcnt vmcnt(0)')
    for e in range(4): k(f'v_lshl_or_b32 v{vE+e}, v{vD+e}, 16, v{vS+e}')
    k('s_mov_b64 s[26:27], exec')
    for e in range(4):
        k(f's_waitcnt lgkmcnt({3-e})' if e == 0 else 's_waitcnt lgkmcnt(%d)' % (3 - e + min(e, 1) * 0))
        k(f'v_lshlrev_b32 v37, 9, v{vB+e}'); k(f'v_lshl_add_u32 v37, v{vPos+e}, 2, v37')
        k(f'v_lshlrev_b32 v38, v{vB+e}, v36')
        k(f'v_cmp_gt_u32 vcc, 128, v{vPos+e}')
        k(f'v_mov_b32 v{40+e}, v37'); k(f'v_mov_b32 v{44+e}, v38')
        k(f's_mov_b64 s[{28+2*e}:{29+2*e}], vcc')
    k(f'v_mov_b32 v39, {CNT+128}')
    for e in range(4):
        k(f's_and_b64 exec, s[26:27], s[{28+2*e}:{29+2*e}]')
        k(f'ds_write_b32 v{40+e}, v{vE+e}')
        k(f's_andn2_b64 exec, s[26:27], s[{28+2*e}:{29+2*e}]')
        k(f'ds_or_b32 v39, v{44+e}')
    k.label('K1_P_SKIP')
    k('s_mov_b64 exec, s[24:25]')
    k('s_waitcnt lgkmcnt(0)'); k('s_barrier')
    st(3)
    k(f'ds_read_b128 v[32:35], v{vOff}')
    k(f'v_mov_b32 v39, {CNT+128}'); k('ds_read_b32 v36, v39')
    k(f's_lshl_b32 s3, s2, 14'); k(f's_add_u32 s3, s3, {CELL}')
    k('s_waitcnt lgkmcnt(1)')
    k(f'buffer_store_dwordx4 v[32:35], v{vOff}, s[{sC}:{sC+3}], s3 offen')
    k('v_cmp_eq_u32 vcc, 0, v0'); k('s_and_saveexec_b64 s[24:25], vcc'); k('s_cbranch_execz K1_END')
    k(f's_lshl_b32 s3, s2, 2'); k(f's_add_u32 s3, s3, {STAT}')
    k('s_waitcnt lgkmcnt(0)')
    k(f'buffer_store_dword v36, v0, s[{sC}:{sC+3}], s3 offen')
    fin()

    k.label('K1_TR')
    k('s_load_dwordx2 s[16:17], s[0:1], 0')
    k('s_load_dwordx2 s[18:19], s[0:1], 24')
    k(f's_sub_u32 s3, s2, {NPROD}'); k('s_lshl_b32 s3, s3, 6')
    k(f'v_add_u32 v8, s3, v{vLane}')
    k('v_lshlrev_b32 v9, 8, v8'); k('v_lshlrev_b32 v10, 1, v8'); k('v_lshlrev_b32 v11, 3, v8')
    k(f's_lshl_b32 s7, s{sWave}, 4')
    k(f's_mul_i32 s24, s{sWave}, {2*QS}'); k(f's_add_u32 s25, s24, {QS}')
    k('s_waitcnt lgkmcnt(0)')
    srd(k, 8, 16, 0, 2560000); srd(k, 12, 18, 0, 20000); srd(k, 20, sWS, GOFF, GSZ)
    k('buffer_load_dwordx4 v[12:15], v9, s[8:11], s7 offen')
    k('buffer_load_ushort v16, v10, s[12:15], 0 offen')
    k(f'v_cmp_gt_u32 vcc, {N}, v8'); k('s_and_saveexec_b64 s[26:27], vcc'); k('s_cbranch_execz K1_END')
    st(1)
    k('s_waitcnt vmcnt(0)')
    st(2)
    k('v_lshlrev_b32 v16, 16, v16')
    for i in range(4):
        k(f'v_lshlrev_b32 v17, 16, v{12+i}'); k(f'v_and_b32 v18, 0xffff0000, v{12+i}')
        k('v_mul_f32 v17, v17, v16'); k('v_mul_f32 v18, v18, v16')
        k(f'v_cvt_pk_bf16_f32 v{20+i}, v17, v18')
    k('buffer_store_dwordx2 v[20:21], v11, s[20:23], s24 offen')
    k('buffer_store_dwordx2 v[22:23], v11, s[20:23], s25 offen')
    fin()

    k.label('K1_WT')
    k('s_load_dwordx8 s[16:23], s[0:1], 32')
    k('s_load_dwordx2 s[24:25], s[0:1], 64')
    k(f'v_and_b32 v{vQ}, 15, v{vLane}'); k(f'v_lshrrev_b32 v{vG}, 4, v{vLane}')
    sRt, sCt = 26, 27
    k(f's_lshr_b32 s{sRt}, s{sWave}, 1'); k(f's_and_b32 s{sCt}, s{sWave}, 1'); k(f's_lshl_b32 s{sCt}, s{sCt}, 2')
    ROW, COL, C0, C1, WP, KK, ZZ = [32768 + 512 * i for i in range(7)]
    k('v_lshlrev_b32 v8, 2, v0')
    k('v_mov_b32 v9, 0'); k(f'v_mov_b32 v10, {hx(f2u(1.0/128))}')
    k('v_sub_u32 v11, v0, 640' if False else 'v_subrev_u32 v11, 640, v0')
    k('v_cmp_gt_u32 vcc, 128, v11'); k('v_cndmask_b32 v9, v9, v10, vcc')
    k('v_cmp_gt_u32 vcc, 896, v0'); k('s_and_saveexec_b64 s[28:29], vcc')
    k('ds_write_b32 v8, v9 offset:32768')
    k('s_mov_b64 exec, s[28:29]')
    vFA = 8
    k(f'v_lshlrev_b32 v{vFA}, 8, v{vQ}'); k(f'v_lshl_add_u32 v{vFA}, v{vG}, 4, v{vFA}')
    k(f's_lshl_b32 s30, s{sRt}, 12')
    k(f's_lshl_b32 s31, s{sCt}, 12')
    vAf, vBf, vDm = 16, 32, 96
    vSt = 9
    k(f'v_lshrrev_b32 v{vT0}, 1, v{vG}'); k(f'v_lshlrev_b32 v{vSt}, 8, v{vT0}')
    k(f'v_and_b32 v{vT0}, 1, v{vG}'); k(f'v_lshl_add_u32 v{vSt}, v{vT0}, 3, v{vSt}')
    k(f's_lshl_b32 s32, s{sRt}, 9')
    k(f'v_add_u32 v{vSt}, s32, v{vSt}')
    k('s_mov_b64 s[34:35], 0x0001000100010001' if False else 's_mov_b32 s34, 0x00010001'); k('s_mov_b32 s35, 0x00010001')
    k('s_waitcnt lgkmcnt(0)')
    srd(k, 36, sWS, WFR, WFR_BYTES)
    k(f's_cmp_eq_u32 s2, {W_W}'); k('s_cbranch_scc1 K1_W2')

    def mfma_all():
        for i in range(4):
            for c in range(4):
                d = V(vDm + 4 * i, 4)
                k(f'v_mfma_f32_16x16x32_bf16 {d}, {V(vAf+4*c,4)}, {V(vBf+16*i+4*c,4)}, {"0" if c == 0 else d}')
    def colsum():
        for i in range(4):
            t = 112 + i
            k(f'v_add_f32 v{t}, v{vDm+4*i}, v{vDm+4*i+1}'); k(f'v_add_f32 v120, v{vDm+4*i+2}, v{vDm+4*i+3}')
            k(f'v_add_f32 v{t}, v{t}, v120')
            xrow_reduce(k, 'v_add_f32', t, 120)
        k(f'v_lshlrev_b32 v121, 2, v{vQ}'); k(f's_lshl_b32 s33, s{sCt}, 6'); k('v_add_u32 v121, s33, v121')
        k('s_mov_b64 exec, 0xffff')
        for i in range(4): k(f'ds_add_f32 v121, v{112+i} offset:{COL + 64*i}')
        k('s_mov_b64 exec, -1')
    def rowsum(src, dst):
        for r in range(4):
            t = 116 + r
            k(f'v_add_f32 v{t}, v{src(0,r)}, v{src(1,r)}'); k(f'v_add_f32 v120, v{src(2,r)}, v{src(3,r)}')
            k(f'v_add_f32 v{t}, v{t}, v120')
            allreduce16(k, 'v_add_f32', t)
        k('s_mov_b64 exec, s[34:35]')
        for r in range(4): k(f'ds_add_f32 v122, v{116+r} offset:{dst + 4*r}')
        k('s_mov_b64 exec, -1')
    def rowaddr():
        k(f'v_lshlrev_b32 v122, 4, v{vG}'); k(f's_lshl_b32 s33, s{sRt}, 6'); k('v_add_u32 v122, s33, v122')

    srd(k, 8, 16, 0, 32768); srd(k, 12, 18, 0, 32768)
    for c in range(4):
        k(f'buffer_load_dwordx4 {V(vAf+4*c,4)}, v{vFA}, s[8:11], s30 offen offset:{64*c}')
    for i in range(4):
        for c in range(4):
            k(f'buffer_load_dwordx4 {V(vBf+16*i+4*c,4)}, v{vFA}, s[12:15], s31 offen offset:{64*c}')
        if i < 3: k('s_add_u32 s31, s31, 4096')
    rowaddr()
    k('s_waitcnt vmcnt(0) lgkmcnt(0)'); k('s_barrier')
    mfma_all()
    colsum()
    rowsum(lambda i, r: vDm + 4 * i + r, ROW)
    k('s_waitcnt lgkmcnt(0)'); k('s_barrier')
    k(f'v_lshlrev_b32 v10, 3, v{vLane}'); k(f'ds_read_b64 v[12:13], v10 offset:{ROW}')
    k(f'ds_read_b128 v[116:119], v122 offset:{ROW}')
    for i in range(4): k(f'ds_read_b32 v{112+i}, v121 offset:{COL+64*i}')
    k('s_waitcnt lgkmcnt(0)')
    k('v_add_f32 v12, v12, v13'); allreduce16(k, 'v_add_f32', 12); xrow_reduce(k, 'v_add_f32', 12, 13)
    k(f's_mov_b32 s40, {hx(f2u(1.0/128))}'); k(f's_mov_b32 s41, {hx(f2u(SCALE))}')
    k('v_mul_f32 v12, s40, v12')
    for r in range(4): k(f'v_sub_f32 v{116+r}, v{116+r}, v12')
    k(f'v_bfe_u32 v10, v{vQ}, 2, 1'); k('v_lshlrev_b32 v10, 12, v10')
    k(f'v_lshrrev_b32 v11, 3, v{vQ}'); k('v_lshl_add_u32 v10, v11, 6, v10')
    k(f'v_and_b32 v11, 3, v{vQ}'); k('v_lshl_add_u32 v10, v11, 4, v10')
    k(f's_lshl_b32 s33, s{sCt}, 12')
    k(f'v_add3_u32 v10, v10, v{vSt}, s33')
    for i in range(4):
        for r in range(4):
            d = vDm + 4 * i + r
            k(f'v_add_f32 v14, v{116+r}, v{112+i}')
            k(f'v_fma_f32 v{d}, -v14, s40, v{d}')
            k(f'v_mul_f32 v{d}, s41, v{d}')
        k(f'v_cvt_pk_bf16_f32 v{vAf+2*i}, v{vDm+4*i}, v{vDm+4*i+1}'); k(f'v_cvt_pk_bf16_f32 v{vAf+2*i+1}, v{vDm+4*i+2}, v{vDm+4*i+3}')
        k(f's_mov_b32 s33, {8192*(i//2) + 128*(i%2)}')
        k(f'buffer_store_dwordx2 {V(vAf+2*i,2)}, v10, s[36:39], s33 offen')
    fin()

    k.label('K1_W2')
    srd(k, 8, 20, 0, 32768); srd(k, 12, 22, 0, 32768); srd(k, 44, 24, 0, 256)
    k('v_lshlrev_b32 v10, 4, v0')
    k('s_movk_i32 s33, 0x4000')
    k('buffer_load_dwordx4 v[100:103], v10, s[12:15], 0 offen')
    k('buffer_load_dwordx4 v[104:107], v10, s[12:15], s33 offen')
    for c in range(4):
        k(f'buffer_load_dwordx4 {V(vAf+4*c,4)}, v{vFA}, s[8:11], s30 offen offset:{64*c}')
    k(f'v_lshlrev_b32 v11, 2, v{vLane}')
    k('buffer_load_dword v12, v11, s[44:47], 0 offen')
    rowaddr()
    k('s_waitcnt vmcnt(5)')
    k('ds_write_b128 v10, v[100:103]'); k('ds_write_b128 v10, v[104:107] offset:16384')
    k('s_waitcnt vmcnt(0)')
    k('v_lshlrev_b32 v14, 16, v12'); k('v_and_b32 v15, 0xffff0000, v12')
    k('v_add_f32 v12, v14, v15'); allreduce16(k, 'v_add_f32', 12); xrow_reduce(k, 'v_add_f32', 12, 13)
    k(f's_mov_b32 s40, {hx(f2u(1.0/128))}')
    k('v_fma_f32 v14, -v12, s40, v14'); k('v_fma_f32 v15, -v12, s40, v15')
    k('s_waitcnt lgkmcnt(0)'); k('s_barrier')
    k(f'v_lshlrev_b32 v11, 3, v{vLane}'); k(f'ds_write_b64 v11, v[14:15] offset:{WP}')
    k(f'v_lshlrev_b32 v10, 3, v{vG}'); k(f'v_lshrrev_b32 v11, 2, v{vQ}'); k('v_add_u32 v10, v10, v11'); k('v_lshlrev_b32 v10, 8, v10')
    k(f'v_and_b32 v11, 3, v{vQ}'); k('v_lshl_add_u32 v10, v11, 3, v10')
    k(f's_lshl_b32 s33, s{sCt}, 5'); k('v_add_u32 v10, s33, v10')
    for i in range(4):
        for c in range(4):
            for h in range(2):
                k(f'ds_read_b64_tr_b16 {V(vBf+16*i+4*c+2*h,2)}, v10 offset:{8192*c + 1024*h + 32*i}')
    k('s_waitcnt lgkmcnt(0)')
    mfma_all()
    colsum()
    k('s_waitcnt lgkmcnt(0)'); k('s_barrier')
    for i in range(4): k(f'ds_read_b32 v{112+i}, v121 offset:{COL+64*i}')
    for i in range(4): k(f'ds_read_b32 v{123+i}, v121 offset:{WP+64*i}')
    k('s_waitcnt lgkmcnt(0)')
    k(f'v_lshlrev_b32 v10, 4, v{vQ}'); k(f's_lshl_b32 s33, s{sCt}, 12'); k(f's_add_u32 s33, s33, 32768')
    k(f'v_add3_u32 v10, v10, v{vSt}, s33')
    for i in range(4):
        for r in range(4):
            d = vDm + 4 * i + r
            k(f'v_fma_f32 v{d}, -v{112+i}, s40, v{d}')
            k(f'v_mul_f32 v{vBf+4*i+r}, v{d}, v{123+i}')
        k(f'v_cvt_pk_bf16_f32 v{vAf+2*i}, v{vDm+4*i}, v{vDm+4*i+1}'); k(f'v_cvt_pk_bf16_f32 v{vAf+2*i+1}, v{vDm+4*i+2}, v{vDm+4*i+3}')
        k(f's_mov_b32 s33, {4096*i}')
        k(f'buffer_store_dwordx2 {V(vAf+2*i,2)}, v10, s[36:39], s33 offen')
    rowsum(lambda i, r: vDm + 4 * i + r, C0)
    rowsum(lambda i, r: vBf + 4 * i + r, C1)
    k('s_waitcnt lgkmcnt(0)'); k('s_barrier')
    k(f's_cmp_ge_u32 s{sWave}, 8'); k('s_cbranch_scc1 K1_END')
    k(f's_and_b32 s33, s{sWave}, 3'); k('s_lshl_b32 s33, s33, 7')
    k(f's_mov_b32 s42, {KK}'); k(f's_mov_b32 s43, {WP}')
    k(f's_cmp_ge_u32 s{sWave}, 4')
    k(f's_cmov_b32 s42, {C0}'); k(f's_cmov_b32 s43, {C1}')
    k(f's_cselect_b32 s41, {hx(f2u(1.0/128))}, 1.0')
    k(f'v_and_b32 v11, 3, v{vQ}')
    k(f'v_mov_b32 v10, {ZZ}'); k('v_mov_b32 v12, s42'); k('v_mov_b32 v13, s43')
    k('v_mov_b32 v14, 1.0'); k('v_mov_b32 v15, s41')
    k('v_cmp_eq_u32 vcc, 0, v11'); k('v_cndmask_b32 v10, v10, v12, vcc'); k('v_cndmask_b32 v14, v14, v15, vcc')
    k('v_cmp_eq_u32 vcc, 1, v11'); k('v_cndmask_b32 v10, v10, v13, vcc')
    k(f'v_lshl_add_u32 v10, v{vG}, 5, v10'); k('v_add_u32 v10, s33, v10')
    k('ds_read_b128 v[16:19], v10'); k('ds_read_b128 v[20:23], v10 offset:16')
    k(f'v_lshlrev_b32 v11, 4, v{vLane}')
    k(f's_lshl_b32 s33, s{sWave}, 10'); k('s_add_u32 s33, s33, 65536')
    k('s_waitcnt lgkmcnt(0)')
    for j in range(8): k(f'v_mul_f32 v{16+j}, v{16+j}, v14')
    for j in range(4): k(f'v_cvt_pk_bf16_f32 v{24+j}, v{16+2*j}, v{17+2*j}')
    k('buffer_store_dwordx4 v[24:27], v11, s[36:39], s33 offen')
    fin()
    k.label('K1_END')
    k('s_endpgm')
    return dict(k=k, grid=K1_GRID, block=1024, lds=K1_LDS, vgpr=128, sgpr=56, accum=128)
```

```python
from common import *

IMG = 81920
CNT = IMG + ELLB
MISC = CNT + 1280
K2_LDS = MISC + 64
DUMMY = 0x27102710
SPIN = 1 << 20

def gen_k2(opts):
    k = Kern()
    force_global = int(opts.get('force_global', 0))
    force_slow = int(opts.get('force_slow', 0))
    sWS = 4
    sF  = 8
    sGR = 12
    sGW = 16
    sHS = 20
    sE  = 24
    sDI = 28
    sWave, sX, sQuad, sPart, sBkt, sMode, sDead, sHop = 32, 33, 34, 35, 36, 37, 38, 39
    sStA, sStB, sTmp, sTmp2, sTmp3, sXcc, sSlow = 40, 41, 42, 43, 44, 45, 46
    sFillM, sFlagW, sFlagR, sHoff, sQoff = 47, 48, 49, 50, 51
    sMk = 52
    sF0 = 68
    sSRC, sDST = 72, 76
    sEx = 80
    sCnt = 82
    vLane, vL16, vT0, vT1, vT2, vT3 = 1, 2, 3, 4, 5, 6
    vDA, vDB, vD2A, vD2B = 7, 8, 9, 10
    vGA, vHA = 11, 12
    vSel = 16
    vAccA, vAccB = 20, 24
    vHpA, vHpB = 28, 30
    vGp = 32
    vAd = 36
    vBuf = 40
    vIA, vIB = 56, 76
    vCell = 56
    vPos = 64
    vStat, vXl = 96, 97
    st = Stamper(k, int(opts.get('stamp', 0)), 100, 88, 1)
    sSI = 92
    k('s_cmp_ge_u32 s2, 256'); k('s_cbranch_scc1 K2_END')
    st.init(); st(0)
    k('s_load_dwordx2 s[4:5], s[0:1], 88')
    k('s_load_dwordx2 s[6:7], s[0:1], 24')
    k('s_load_dwordx4 s[84:87], s[0:1], 8')
    k(f'v_lshrrev_b32 v{vT0}, 6, v0'); k(f'v_and_b32 v{vLane}, 63, v0')
    k(f'v_readfirstlane_b32 s{sWave}, v{vT0}')
    k(f'v_lshlrev_b32 v{vL16}, 4, v{vLane}')
    k(f's_and_b32 s{sX}, s2, 7'); k(f's_lshr_b32 s{sTmp}, s2, 3')
    k(f's_and_b32 s{sPart}, s{sTmp}, 7'); k(f's_lshr_b32 s{sTmp}, s{sTmp}, 3')
    k(f's_lshl_b32 s{sQuad}, s{sX}, 2'); k(f's_add_u32 s{sQuad}, s{sQuad}, s{sTmp}')
    k(f's_lshl_b32 s{sBkt}, s{sPart}, 2'); k(f's_add_u32 s{sBkt}, s{sBkt}, s{sTmp}')
    k(f's_getreg_b32 s{sXcc}, hwreg(HW_REG_XCC_ID, 0, 4)'); k(f's_add_u32 s{sXcc}, s{sXcc}, 1')
    k(f's_mov_b32 s{sDead}, 0')
    k(f's_mul_i32 s{sQoff}, s{sQuad}, {QS}'); k(f's_add_u32 s{sQoff}, s{sQoff}, {GOFF}')
    k(f'v_lshrrev_b32 v{vT0}, 5, v0'); k(f'v_lshlrev_b32 v{vT0}, 14, v{vT0}')
    k(f'v_and_b32 v{vT1}, 31, v0'); k(f'v_lshl_add_u32 v{vT0}, v{vT1}, 4, v{vT0}')
    k(f's_lshl_b32 s{sTmp}, s{sBkt}, 9'); k(f's_add_u32 s{sTmp}, s{sTmp}, {CELL}'); k(f's_add_u32 s{sTmp2}, s{sTmp}, {32*16384}')
    k(f's_mul_i32 s{sTmp3}, s{sPart}, 1280'); k(f'v_add_u32 v{vT1}, s{sTmp3}, v0')
    k(f'v_lshlrev_b32 v{vT2}, 1, v{vT1}')
    k(f'v_lshlrev_b32 v{vGA}, 3, v{vT1}')
    k(f'v_lshrrev_b32 v{vHA}, 3, v{vT1}'); k(f'v_lshlrev_b32 v{vHA}, 11, v{vHA}')
    k(f'v_and_b32 v{vT3}, 7, v{vT1}'); k(f'v_lshl_add_u32 v{vHA}, v{vT3}, 3, v{vHA}')
    k(f's_lshl_b32 s{sHoff}, s{sQuad}, 6'); k(f'v_add_u32 v{vHA}, s{sHoff}, v{vHA}')
    k(f'v_lshlrev_b32 v{vT3}, 2, v{vLane}')
    k('s_waitcnt lgkmcnt(0)')
    srd(k, sF, sWS, 0, CELL + 64 * 16384)
    srd(k, sGR, sWS, f's{sQoff}', 80000)
    srd(k, sDI, 6, 0, 20000)
    k(f'buffer_load_dwordx4 {V(vCell,4)}, v{vT0}, s[{sF}:{sF+3}], s{sTmp} offen')
    k(f'buffer_load_dwordx4 {V(vCell+4,4)}, v{vT0}, s[{sF}:{sF+3}], s{sTmp2} offen')
    k(f's_cmp_lg_u32 s{sWave}, 0'); k('s_cbranch_scc1 K2_NOPUB')
    k(f's_lshl_b32 s{sTmp}, s{sX}, 7'); k(f's_lshr_b32 s{sTmp2}, s2, 3'); k(f's_lshl_b32 s{sTmp2}, s{sTmp2}, 2')
    k(f's_add_u32 s{sTmp}, s{sTmp}, s{sTmp2}'); k(f's_add_u32 s{sTmp}, s{sTmp}, {XCCF}')
    k(f'v_mov_b32 v{vXl}, s{sXcc}')
    k('s_mov_b64 exec, 1')
    k(f'buffer_store_dword v{vXl}, v{vLane}, s[{sF}:{sF+3}], s{sTmp} offen sc1')
    k('s_mov_b64 exec, -1')
    k.label('K2_NOPUB')
    k(f's_mov_b32 s{sTmp}, {STAT}')
    k(f'buffer_load_dword v{vStat}, v{vT3}, s[{sF}:{sF+3}], s{sTmp} offen')
    k(f'buffer_load_ushort v{vDA}, v{vT2}, s[{sDI}:{sDI+3}], 0 offen')
    k(f'buffer_load_ushort v{vDB}, v{vT2}, s[{sDI}:{sDI+3}], 0 offen offset:2048')
    k(f's_mul_i32 s{sFillM}, s{sWave}, 5120')
    def fill():
        k(f's_mov_b32 m0, s{sFillM}')
        k(f's_add_u32 s{sTmp}, s{sFillM}, 4096')
        for i in range(4):
            k(f'buffer_load_dwordx4 v{vL16}, s[{sGR}:{sGR+3}], s{sFillM} offen offset:{1024*i} sc1 lds')
        k(f's_mov_b32 m0, s{sTmp}')
        k(f'buffer_load_dwordx4 v{vL16}, s[{sGR}:{sGR+3}], s{sTmp} offen sc1 lds')
    fill()
    srd(k, sHS, sWS, HOFF, 7 * HSZ)
    k(f's_lshl_b32 s{sTmp}, s{sX}, 3'); k(f's_add_u32 s{sTmp}, s{sTmp}, s{sPart}'); k(f's_mul_i32 s{sTmp}, s{sTmp}, {4*ELLB}')
    k(f's_add_u32 s{sTmp}, s{sTmp}, {ELL}')
    srd(k, sE, sWS, f's{sTmp}', 4 * ELLB)
    srd(k, sSRC, 84, 0, 640000); srd(k, sDST, 86, 0, 640000)
    srd(k, sGW, sWS, f's{sQoff}', 80000)
    k(f'v_lshlrev_b32 v{vT0}, 4, v0')
    for i in range(4): k(f'v_mov_b32 v{vBuf+i}, {hx(DUMMY)}')
    for i in range(4): k(f'v_mov_b32 v{vBuf+4+i}, 0')
    k(f'v_add_u32 v{vT0}, {IMG}, v{vT0}')
    k(f'ds_write_b128 v{vT0}, {V(vBuf,4)}')
    k(f'v_cmp_gt_u32 vcc, 576, v0')
    for i in range(4): k(f'v_cndmask_b32 v{vBuf+i}, 0, v{vBuf+i}, vcc')
    k(f'v_cmp_gt_u32 vcc, 660, v0'); k(f's_and_saveexec_b64 s[{sEx}:{sEx+1}], vcc')
    k(f'ds_write_b128 v{vT0}, {V(vBuf,4)} offset:16384')
    k(f's_mov_b64 exec, s[{sEx}:{sEx+1}]')
    k(f'v_and_b32 v{vT0}, 15, v{vLane}'); k(f'v_lshrrev_b32 v{vT1}, 4, v{vLane}')
    k(f'v_lshlrev_b32 v{vT1}, 2, v{vT1}'); k(f'v_sub_u32 v{vT0}, v{vT0}, v{vT1}')
    k(f'v_mov_b32 v{vT1}, 0x3f80'); k(f'v_mov_b32 v{vT2}, 0x3f800000')
    for i in range(2):
        k(f'v_cmp_eq_u32 vcc, {2*i}, v{vT0}'); k(f'v_cndmask_b32 v{vSel+i}, 0, v{vT1}, vcc')
        k(f'v_cmp_eq_u32 vcc, {2*i+1}, v{vT0}'); k(f'v_cndmask_b32 v{vSel+i}, v{vSel+i}, v{vT2}, vcc')
        k(f'v_mov_b32 v{vSel+2+i}, v{vSel+i}')
    k(f'v_mov_b32 v{vT2}, 1')
    st(1)
    k('s_waitcnt lgkmcnt(0)'); k('s_barrier')
    k(f's_lshl_b32 s{sTmp3}, s{sX}, 7'); k(f's_add_u32 s{sTmp3}, s{sTmp3}, {XCCF}')
    k(f'v_and_b32 v{vT3}, 31, v{vLane}'); k(f'v_lshlrev_b32 v{vT3}, 2, v{vT3}')
    k('s_waitcnt vmcnt(8)')
    k(f'buffer_load_dword v{vXl}, v{vT3}, s[{sF}:{sF+3}], s{sTmp3} offen sc1')
    st(2)
    for e in range(8):
        k(f'v_cmp_ne_u32 s[{sMk+2*e}:{sMk+2*e+1}], -1, v{vCell+e}')
        k(f'v_lshrrev_b32 v{vBuf+e}, 16, v{vCell+e}')
        k(f'v_lshlrev_b32 v{vBuf+8+e}, 2, v{vBuf+e}')
    k(f'v_mov_b32 v{vT1}, {CNT}')
    for e in range(8): k(f'v_add_u32 v{vBuf+8+e}, v{vT1}, v{vBuf+8+e}')
    for e in range(8):
        k(f's_mov_b64 exec, s[{sMk+2*e}:{sMk+2*e+1}]')
        k(f'ds_add_rtn_u32 v{vPos+e}, v{vBuf+8+e}, v{vT2}')
    k('s_mov_b64 exec, -1')
    for e in range(8):
        k(f'v_lshrrev_b32 v{vT0}, 6, v{vBuf+e}'); k(f'v_mul_u32_u24 v{vT0}, 5120, v{vT0}')
        k(f'v_and_b32 v{vT1}, 63, v{vBuf+e}'); k(f'v_lshl_add_u32 v{vT0}, v{vT1}, 4, v{vT0}')
        k(f'v_add_u32 v{vBuf+e}, {IMG}, v{vT0}')
    for e in range(8):
        k(f's_waitcnt lgkmcnt({7-e+min(e,8)})' if False else f's_waitcnt lgkmcnt(7)')
        k(f'v_lshrrev_b32 v{vT0}, 3, v{vPos+e}'); k(f'v_lshl_add_u32 v{vBuf+e}, v{vT0}, 10, v{vBuf+e}')
        k(f'v_and_b32 v{vT0}, 7, v{vPos+e}'); k(f'v_lshl_add_u32 v{vBuf+e}, v{vT0}, 1, v{vBuf+e}')
        k(f'v_cmp_gt_u32 vcc, {CAP}, v{vPos+e}')
        k(f's_and_b64 exec, vcc, s[{sMk+2*e}:{sMk+2*e+1}]')
        k(f'ds_write_b16 v{vBuf+e}, v{vCell+e}')
        k('s_mov_b64 exec, -1')
    k('s_waitcnt lgkmcnt(0)'); k('s_barrier')
    st(3)
    k(f's_cmp_ge_u32 s{sWave}, 5'); k('s_cbranch_scc1 K2_NOSTEP')
    k(f'v_lshlrev_b32 v{vT0}, 2, v0'); k(f'v_add_u32 v{vT0}, {CNT}, v{vT0}')
    k(f'ds_read_b32 v{vT1}, v{vT0}'); k('s_waitcnt lgkmcnt(0)')
    allreduce16(k, 'v_max_u32', vT1); xrow_reduce(k, 'v_max_u32', vT1, vT0)
    k(f'v_cmp_lt_u32 vcc, {CAP}, v{vT1}'); k(f'v_cndmask_b32 v{vT1}, v{vT1}, 63, vcc')
    k(f's_mul_i32 s{sTmp}, s{sWave}, 6'); k(f'v_lshlrev_b32 v{vT1}, s{sTmp}, v{vT1}')
    k(f'v_mov_b32 v{vT0}, {MISC}')
    k('s_mov_b64 exec, 1'); k(f'ds_or_b32 v{vT0}, v{vT1}'); k('s_mov_b64 exec, -1')
    k.label('K2_NOSTEP')
    k(f's_lshl_b32 s{sTmp}, s{sWave}, 10'); k(f's_add_u32 s{sTmp2}, s{sTmp}, {IMG}')
    k(f'v_add_u32 v{vT0}, s{sTmp2}, v{vL16}')
    k(f'ds_read_b128 {V(vBuf,4)}, v{vT0}'); k(f'ds_read_b128 {V(vBuf+4,4)}, v{vT0} offset:16384')
    k(f's_mov_b32 s{sCnt}, 0')
    k.label('K2_XPOLL')
    k('s_waitcnt vmcnt(0)')
    k(f'v_cmp_eq_u32 vcc, 0, v{vXl}'); k('s_cbranch_vccz K2_XDONE')
    k(f's_add_u32 s{sCnt}, s{sCnt}, 1'); k(f's_cmp_lt_u32 s{sCnt}, {SPIN}'); k('s_cbranch_scc0 K2_XDEAD')
    k(f'buffer_load_dword v{vXl}, v{vT3}, s[{sF}:{sF+3}], s{sTmp3} offen sc1')
    k('s_branch K2_XPOLL')
    k.label('K2_XDEAD'); k(f's_mov_b32 s{sDead}, 1')
    k.label('K2_XDONE')
    st(4)
    k(f'v_cmp_ne_u32 vcc, s{sXcc}, v{vXl}')
    k(f's_cmp_eq_u64 vcc, 0'); k(f's_cselect_b32 s{sMode}, 1, 0')
    if force_global: k(f's_mov_b32 s{sMode}, 0')
    k(f'v_lshlrev_b32 v{vDA}, 16, v{vDA}'); k(f'v_lshlrev_b32 v{vDB}, 16, v{vDB}')
    k(f'v_mul_f32 v{vD2A}, v{vDA}, v{vDA}'); k(f'v_mul_f32 v{vD2B}, v{vDB}, v{vDB}')
    k(f'v_lshrrev_b32 v{vStat}, s{sBkt}, v{vStat}'); k(f'v_and_b32 v{vStat}, 1, v{vStat}')
    k(f'v_cmp_ne_u32 vcc, 0, v{vStat}'); k(f's_cmp_lg_u64 vcc, 0'); k(f's_cselect_b32 s{sSlow}, 0x3fffffff, 0')
    k(f's_and_b32 s{sTmp2}, s{sBkt}, 3'); k(f's_mul_i32 s{sTmp2}, s{sTmp2}, {ELLB}'); k(f's_add_u32 s{sTmp}, s{sTmp}, s{sTmp2}')
    k(f's_add_u32 s{sTmp2}, s{sTmp}, 16384')
    k('s_waitcnt lgkmcnt(0)')
    def dual(fn, tag):
        k(f's_cmp_eq_u32 s{sMode}, 0'); k(f's_cbranch_scc1 {tag}_G')
        fn(''); k(f's_branch {tag}_J')
        k.label(f'{tag}_G'); fn(' sc1')
        k.label(f'{tag}_J')
    def exp_st(fl):
        k(f'buffer_store_dwordx4 {V(vBuf,4)}, v{vL16}, s[{sE}:{sE+3}], s{sTmp} offen{fl}')
        t = 'K2_EXS' + ('G' if fl else 'L')
        k(f's_cmp_ge_u32 s{sWave}, 9'); k(f's_cbranch_scc1 {t}')
        k(f'buffer_store_dwordx4 {V(vBuf+4,4)}, v{vL16}, s[{sE}:{sE+3}], s{sTmp2} offen{fl}')
        k.label(t)
    dual(exp_st, 'K2_EXP')
    k(f's_lshl_b32 s{sTmp}, s{sX}, 5'); k(f's_add_u32 s{sTmp}, s{sTmp}, s{sBkt}'); k(f's_lshl_b32 s{sTmp}, s{sTmp}, 7')
    k(f's_add_u32 s{sTmp}, s{sTmp}, {BLDF}')
    k(f's_and_b32 s{sTmp2}, s{sTmp}, {hx(~511)}')
    k(f's_lshl_b32 s{sFlagW}, s{sQuad}, 3'); k(f's_lshr_b32 s{sTmp3}, s{sWave}, 1')
    k(f's_add_u32 s{sFlagR}, s{sFlagW}, s{sTmp3}'); k(f's_add_u32 s{sFlagW}, s{sFlagW}, s{sPart}')
    k(f's_lshl_b32 s{sFlagW}, s{sFlagW}, 7'); k(f's_lshl_b32 s{sFlagR}, s{sFlagR}, 7')
    k(f'v_and_b32 v{vT3}, 3, v{vLane}'); k(f'v_lshlrev_b32 v{vT3}, 7, v{vT3}')
    k('s_waitcnt vmcnt(0) lgkmcnt(0)'); k('s_barrier')
    st(5)
    k(f's_cmp_lg_u32 s{sWave}, 0'); k('s_cbranch_scc1 K2_NOBF')
    k(f'v_mov_b32 v{vT0}, {MISC}'); k(f'ds_read_b32 v{vT1}, v{vT0}')
    k(f's_or_b32 s{sSlow}, s{sSlow}, 0x80000000')
    k(f'v_mov_b32 v{vT0}, 0')
    k('s_waitcnt lgkmcnt(0)')
    k(f'v_or_b32 v{vT1}, s{sSlow}, v{vT1}')
    k('s_mov_b64 exec, 1')
    dual(lambda fl: k(f'buffer_store_dword v{vT1}, v{vT0}, s[{sF}:{sF+3}], s{sTmp} offen{fl}'), 'K2_BF')
    k('s_mov_b64 exec, -1')
    k.label('K2_NOBF')
    k(f's_mov_b32 s{sCnt}, 0')
    k.label('K2_BPOLL')
    k(f'buffer_load_dword v{vT1}, v{vT3}, s[{sF}:{sF+3}], s{sTmp2} offen sc1')
    k('s_waitcnt vmcnt(0)')
    k(f'v_cmp_le_i32 vcc, 0, v{vT1}'); k('s_cbranch_vccz K2_BDONE')
    k(f's_add_u32 s{sCnt}, s{sCnt}, 1'); k(f's_cmp_lt_u32 s{sCnt}, {SPIN}'); k('s_cbranch_scc1 K2_BPOLL')
    k(f's_mov_b32 s{sDead}, 1')
    k.label('K2_BDONE')
    st(6)
    for i in range(4): k(f'v_readlane_b32 s{sF0+i}, v{vT1}, {i}')
    k(f's_mov_b32 s{sSlow}, {force_slow}')
    for i in range(4):
        for c in range(5):
            k(f's_bfe_u32 s{sTmp}, s{sF0+i}, {hex((6 << 16) | (6 * c))}'); k(f's_cmp_eq_u32 s{sTmp}, 63'); k(f's_cmov_b32 s{sSlow}, 1')
    k(f's_mul_i32 s{sTmp}, s{sWave}, 52'); k(f's_lshr_b32 s{sTmp}, s{sTmp}, 8')
    k(f's_mul_i32 s{sTmp2}, s{sTmp}, 5'); k(f's_sub_u32 s{sTmp2}, s{sWave}, s{sTmp2}')
    k(f's_mov_b32 s{sStA}, s{sF0}')
    for i in range(1, 4):
        k(f's_cmp_eq_u32 s{sTmp}, {i}'); k(f's_cmov_b32 s{sStA}, s{sF0+i}')
    k(f's_mul_i32 s{sTmp2}, s{sTmp2}, 6'); k(f's_lshr_b32 s{sStA}, s{sStA}, s{sTmp2}'); k(f's_and_b32 s{sStA}, s{sStA}, 63')
    k(f's_mul_i32 s{sTmp2}, s{sWave}, 6'); k(f's_add_u32 s{sTmp2}, s{sTmp2}, 6')
    k(f's_lshr_b32 s{sStB}, s{sF0+3}, s{sTmp2}'); k(f's_and_b32 s{sStB}, s{sStB}, 63')
    k(f's_cmp_ge_u32 s{sWave}, 4'); k(f's_cmov_b32 s{sStB}, 0')
    k(f's_cmp_lg_u32 s{sSlow}, 0'); k(f's_cmov_b32 s{sStA}, 0'); k(f's_cmov_b32 s{sStB}, 0')
    k(f's_add_u32 s{sTmp2}, s{sFillM}, {16*5120}')
    for (vi, stp, so, tag) in ((vIA, sStA, sFillM, 'A'), (vIB, sStB, sTmp2, 'B')):
        for b in range(5):
            k(f's_cmp_le_u32 s{stp}, {8*b}'); k(f's_cbranch_scc1 K2_IL{tag}')
            if b < 4:
                k(f'buffer_load_dwordx4 {V(vi+4*b,4)}, v{vL16}, s[{sE}:{sE+3}], s{so} offen offset:{1024*b} sc1')
            else:
                k(f's_add_u32 s{sTmp}, s{so}, 4096')
                k(f'buffer_load_dwordx4 {V(vi+4*b,4)}, v{vL16}, s[{sE}:{sE+3}], s{sTmp} offen sc1')
        k.label(f'K2_IL{tag}')
    k(f's_mov_b32 s{sHop}, 1'); k(f's_mov_b32 s{sHoff}, 0')
    k('s_waitcnt vmcnt(0)')

    def hst(j):
        if st.on:
            k(f's_mul_i32 s{sSI}, s{sHop}, 6'); k(f's_add_u32 m0, s{sSI}, {2+j}'); k('s_nop 3'); st('m0')
    k.label('K2_HOP')
    hst(0)
    k(f's_and_b32 s{sTmp}, s{sHop}, 1'); k(f's_add_u32 s{sTmp}, s{sTmp}, 1'); k(f's_add_u32 s{sTmp2}, s{sHop}, 2')
    k(f's_cmp_eq_u32 s{sMode}, 0'); k(f's_cmov_b32 s{sTmp}, s{sTmp2}')
    k(f's_mul_i32 s{sTmp}, s{sTmp}, {GSZ}'); k(f's_add_u32 s{sTmp}, s{sTmp}, s{sQoff}')
    k(f's_add_u32 s{sGW}, s{sWS}, s{sTmp}'); k(f's_addc_u32 s{sGW+1}, s{sWS+1}, 0')
    k(f's_cmp_lg_u32 s{sSlow}, 0'); k('s_cbranch_scc1 K2_SLOW')
    def gather(vi, st, acc, tag):
        for r in range(4): k(f'v_mov_b32 v{acc+r}, 0')
        k(f's_cmp_eq_u32 s{st}, 0'); k(f's_cbranch_scc1 {tag}_D')
        def issue(gi):
            b = vBuf + 8 * (gi % 2)
            for j in range(4):
                s = 4 * gi + j
                k(f'v_lshlrev_b32_sdwa v{vAd+j}, 3, v{vi+s//2} dst_sel:DWORD dst_unused:UNUSED_PAD src0_sel:DWORD src1_sel:WORD_{s%2}')
                k(f'ds_read_b64 {V(b+2*j,2)}, v{vAd+j}')
        def acc2(gi):
            b = vBuf + 8 * (gi % 2)
            for h in range(2):
                k(f'v_mfma_f32_16x16x32_bf16 {V(acc,4)}, {V(vSel,4)}, {V(b+4*h,4)}, {V(acc,4)}')
        issue(0)
        for gi in range(1, CAP // 4):
            k(f's_cmp_le_u32 s{st}, {4*gi}'); k(f's_cbranch_scc1 {tag}_T{(gi-1)%2}')
            issue(gi)
            k('s_waitcnt lgkmcnt(4)')
            acc2(gi - 1)
        last = (CAP // 4 - 1) % 2
        k.label(f'{tag}_T{last}'); k('s_waitcnt lgkmcnt(0)'); acc2(last); k(f's_branch {tag}_D')
        k.label(f'{tag}_T{1-last}'); k('s_waitcnt lgkmcnt(0)'); acc2(1 - last)
        k.label(f'{tag}_D')
    gather(vIA, sStA, vAccA, 'K2_GA')
    gather(vIB, sStB, vAccB, 'K2_GB')
    k.label('K2_EPI')
    hst(1)
    def scale(acc, d, dst, tmp):
        for r in range(4): k(f'v_mul_f32 v{tmp+r}, v{acc+r}, v{d}')
        k(f'v_cvt_pk_bf16_f32 v{dst}, v{tmp}, v{tmp+1}'); k(f'v_cvt_pk_bf16_f32 v{dst+1}, v{tmp+2}, v{tmp+3}')
    k(f's_cmp_eq_u32 s{sHop}, 7'); k('s_cbranch_scc1 K2_LAST')
    scale(vAccA, vD2A, vGp, vBuf); scale(vAccB, vD2B, vGp + 2, vBuf + 4)
    k(f's_movk_i32 s{sTmp}, 0x2000')
    def g_st(fl):
        k(f'buffer_store_dwordx2 {V(vGp,2)}, v{vGA}, s[{sGW}:{sGW+3}], 0 offen{fl}')
        t = 'K2_GS' + ('G' if fl else 'L')
        k(f's_cmp_ge_u32 s{sWave}, 4'); k(f's_cbranch_scc1 {t}')
        k(f'buffer_store_dwordx2 {V(vGp+2,2)}, v{vGA}, s[{sGW}:{sGW+3}], s{sTmp} offen{fl}')
        k.label(t)
    dual(g_st, 'K2_GST')
    scale(vAccA, vDA, vHpA, vBuf); scale(vAccB, vDB, vHpB, vBuf + 4)
    k(f's_mov_b32 s{sGR}, s{sGW}'); k(f's_mov_b32 s{sGR+1}, s{sGW+1}')
    k(f'v_mov_b32 v{vT0}, 0'); k(f'v_mov_b32 v{vT1}, s{sHop}')
    k('s_waitcnt vmcnt(0)'); hst(2); k('s_barrier'); hst(3)
    k(f's_cmp_lg_u32 s{sWave}, 0'); k('s_cbranch_scc1 K2_NOHF')
    k('s_mov_b64 exec, 1')
    dual(lambda fl: k(f'buffer_store_dword v{vT1}, v{vT0}, s[{sF}:{sF+3}], s{sFlagW} offen{fl}'), 'K2_HF')
    k('s_mov_b64 exec, -1')
    k.label('K2_NOHF')
    k(f's_cmp_lg_u32 s{sDead}, 0'); k('s_cbranch_scc1 K2_HDONE')
    k(f's_mov_b32 s{sCnt}, 0')
    k('s_mov_b64 exec, 1')
    k.label('K2_HPOLL')
    k(f'buffer_load_dword v{vT1}, v{vT0}, s[{sF}:{sF+3}], s{sFlagR} offen sc1')
    k('s_waitcnt vmcnt(0)')
    k(f'v_cmp_gt_u32 vcc, s{sHop}, v{vT1}'); k('s_cbranch_vccz K2_HOK')
    k(f's_add_u32 s{sCnt}, s{sCnt}, 1'); k(f's_cmp_lt_u32 s{sCnt}, {SPIN}'); k('s_cbranch_scc1 K2_HPOLL')
    k(f's_mov_b32 s{sDead}, 1')
    k.label('K2_HOK')
    k('s_mov_b64 exec, -1')
    k.label('K2_HDONE')
    hst(4)
    fill()
    def h_st(tag):
        k(f'buffer_store_dwordx2 {V(vHpA,2)}, v{vHA}, s[{sHS}:{sHS+3}], s{sHoff} offen sc1')
        k(f's_cmp_ge_u32 s{sWave}, 4'); k(f's_cbranch_scc1 {tag}')
        k(f's_add_u32 s{sTmp}, s{sHoff}, {128*2048}')
        k(f'buffer_store_dwordx2 {V(vHpB,2)}, v{vHA}, s[{sHS}:{sHS+3}], s{sTmp} offen sc1')
    def h_masked(tag, waitA, waitB):
        k(f'v_cmp_gt_u32 vcc, 80000, v{vGA}'); k('s_mov_b64 exec, vcc')
        k(f's_cbranch_execz {tag}_N')
        k(f'buffer_store_dwordx2 {V(vHpA,2)}, v{vHA}, s[{sHS}:{sHS+3}], s{sHoff} offen sc1')
        k(f's_cmp_ge_u32 s{sWave}, 4'); k(f's_cbranch_scc1 {tag}_1')
        k(f'v_cmp_gt_u32 vcc, {80000-8192}, v{vGA}'); k('s_mov_b64 exec, vcc')
        k(f's_cbranch_execz {tag}_1')
        k(f's_add_u32 s{sTmp}, s{sHoff}, {128*2048}')
        k(f'buffer_store_dwordx2 {V(vHpB,2)}, v{vHA}, s[{sHS}:{sHS+3}], s{sTmp} offen sc1')
        if waitA: k('s_waitcnt vmcnt(2)')
        k(f's_branch {tag}_E')
        k.label(f'{tag}_1')
        if waitA: k('s_waitcnt vmcnt(1)')
        k(f's_branch {tag}_E')
        k.label(f'{tag}_N')
        if waitA: k('s_waitcnt vmcnt(0)')
        k.label(f'{tag}_E')
        k('s_mov_b64 exec, -1')
    h_masked('K2_HS', True, True)
    hst(5)
    k(f's_add_u32 s{sHop}, s{sHop}, 1'); k(f's_add_u32 s{sHoff}, s{sHoff}, {HSZ}')
    k('s_barrier')
    k('s_branch K2_HOP')
    k.label('K2_LAST')
    scale(vAccA, vDA, vHpA, vBuf); scale(vAccB, vDB, vHpB, vBuf + 4)
    h_masked('K2_HL', False, False)
    hst(2)
    if st.on: k('s_waitcnt vmcnt(0)')
    hst(3)
    st.flush(sWS, sWave, vT0)
    k('s_endpgm')

    k.label('K2_SLOW')
    ACC = IMG
    k(f'v_lshlrev_b32 v{vT0}, 4, v0'); k(f'v_add_u32 v{vT0}, {ACC}, v{vT0}')
    for r in range(4): k(f'v_mov_b32 v{vBuf+r}, 0')
    k(f'ds_write_b128 v{vT0}, {V(vBuf,4)}')
    k(f's_cmp_ge_u32 s{sWave}, 4'); k('s_cbranch_scc1 K2_SZ')
    k(f'ds_write_b128 v{vT0}, {V(vBuf,4)} offset:16384')
    k.label('K2_SZ')
    k(f's_mul_i32 s{sTmp3}, s{sPart}, 1280')
    k(f'v_lshlrev_b32 v{vT1}, 2, v0')
    k(f's_mov_b32 s{sCnt}, 0')
    k('s_waitcnt lgkmcnt(0)'); k('s_barrier')
    k.label('K2_SLOOP')
    k(f'buffer_load_dword v{vBuf}, v{vT1}, s[{sDST}:{sDST+3}], s{sCnt} offen')
    k(f'buffer_load_dword v{vBuf+1}, v{vT1}, s[{sSRC}:{sSRC+3}], s{sCnt} offen')
    k(f'v_add_u32 v{vT2}, s{sCnt}, v{vT1}')
    k(f'v_cmp_gt_u32 s[{sEx}:{sEx+1}], s{sSRC+2}, v{vT2}')
    k('s_waitcnt vmcnt(0)')
    k(f'v_subrev_u32 v{vBuf}, s{sTmp3}, v{vBuf}')
    k(f'v_cmp_gt_u32 vcc, 1280, v{vBuf}')
    k(f's_and_b64 exec, vcc, s[{sEx}:{sEx+1}]')
    k(f'v_lshlrev_b32 v{vBuf+1}, 3, v{vBuf+1}')
    k(f'ds_read_b64 {V(vBuf+2,2)}, v{vBuf+1}')
    k(f'v_lshlrev_b32 v{vBuf}, 4, v{vBuf}'); k(f'v_add_u32 v{vBuf}, {ACC}, v{vBuf}')
    k('s_waitcnt lgkmcnt(0)')
    k(f'v_lshlrev_b32 v{vBuf+4}, 16, v{vBuf+2}'); k(f'v_and_b32 v{vBuf+5}, 0xffff0000, v{vBuf+2}')
    k(f'v_lshlrev_b32 v{vBuf+6}, 16, v{vBuf+3}'); k(f'v_and_b32 v{vBuf+7}, 0xffff0000, v{vBuf+3}')
    for r in range(4): k(f'ds_add_f32 v{vBuf}, v{vBuf+4+r} offset:{4*r}')
    k('s_mov_b64 exec, -1')
    k(f's_add_u32 s{sCnt}, s{sCnt}, 4096'); k(f's_cmp_lt_u32 s{sCnt}, 640000'); k('s_cbranch_scc1 K2_SLOOP')
    k('s_waitcnt lgkmcnt(0)'); k('s_barrier')
    k(f'ds_read_b128 {V(vAccA,4)}, v{vT0}'); k(f'ds_read_b128 {V(vAccB,4)}, v{vT0} offset:16384')
    k('s_waitcnt lgkmcnt(0)')
    k('s_branch K2_EPI')
    k.label('K2_END')
    k('s_endpgm')
    return dict(k=k, grid=256, block=1024, lds=K2_LDS, vgpr=104, sgpr=96, accum=104)
```

```python
from common import *

TOKB = 73728
TSTR = 2064
GSTR = 8 * TSTR
K3_LDS = TOKB + 5 * GSTR
SCR = 8192
LOG2E = 1.4426950408889634

def gen_k3(opts):
    k = Kern()
    sX, sH, sW, sO = 8, 12, 16, 20
    sWave, sT, sOutOff, sTmp, sTmp2, sHoff, sXoff, sPair = 24, 25, 26, 27, 28, 29, 30, 31
    sC128, sEps, sL2e = 32, 33, 34
    sBuf = 35
    st = Stamper(k, int(opts.get('stamp', 0)), 127, 44, 2)
    k('s_cmp_ge_u32 s2, 250'); k('s_cbranch_scc1 K3_END')
    st.init(); st(0)
    def rst(j):
        if st.on:
            k(f's_lshl_b32 s43, s{sT}, 2'); k(f's_add_u32 m0, s43, {8+j}'); k('s_nop 3'); st('m0')
    k('s_load_dwordx2 s[4:5], s[0:1], 0')
    k('s_load_dwordx2 s[6:7], s[0:1], 72')
    k('s_load_dwordx2 s[36:37], s[0:1], 88')
    vLane, vL16, vT0, vT1, vT2, vQ, vG = 1, 2, 3, 4, 5, 6, 7
    vX0 = 8
    k(f'v_lshrrev_b32 v{vT0}, 6, v0')
    k(f'v_and_b32 v{vLane}, 63, v0')
    k(f'v_readfirstlane_b32 s{sWave}, v{vT0}')
    k(f'v_lshlrev_b32 v{vL16}, 4, v{vLane}')
    k(f'v_and_b32 v{vQ}, 15, v{vLane}')
    k(f'v_lshrrev_b32 v{vG}, 4, v{vLane}')
    k(f'v_lshrrev_b32 v{vT0}, 1, v{vQ}'); k(f'v_lshlrev_b32 v{vX0}, 8, v{vT0}')
    k(f'v_lshl_add_u32 v{vX0}, v{vG}, 3, v{vX0}')
    k(f'v_and_b32 v{vT0}, 1, v{vLane}'); k(f'v_lshl_add_u32 v{vX0}, v{vT0}, 2, v{vX0}')
    k(f's_lshl_b32 s{sTmp}, s{sWave}, 5'); k(f'v_add_u32 v{vX0}, s{sTmp}, v{vX0}')
    k(f's_mul_i32 s{sXoff}, s2, {40*256}')
    k(f's_mov_b32 s{sOutOff}, s{sXoff}')
    k(f's_min_u32 s{sTmp}, s{sWave}, 6')
    k(f's_mul_i32 s{sHoff}, s{sTmp}, {HSZ}')
    k(f's_mul_i32 s{sTmp2}, s2, {5*2048}'); k(f's_add_u32 s{sHoff}, s{sHoff}, s{sTmp2}')
    sM0, sM1 = 38, 39
    k(f's_add_u32 s{sTmp}, s{sTmp}, 1'); k(f's_mul_i32 s{sM1}, s{sTmp}, {TSTR}'); k(f's_add_u32 s{sM1}, s{sM1}, {TOKB}')
    k(f's_lshl_b32 s{sM0}, s{sWave}, 8'); k(f's_add_u32 s{sM0}, s{sM0}, {TOKB}')
    k(f's_and_b32 s{sPair}, s{sWave}, 3')
    k(f's_mov_b32 s{sC128}, {hx(f2u(1.0/128))}'); k(f's_mov_b32 s{sEps}, {hx(f2u(EPS))}'); k(f's_mov_b32 s{sL2e}, {hx(f2u(LOG2E))}')
    k('s_waitcnt lgkmcnt(0)')
    srd(k, sX, 4, 0, 2560000); srd(k, sH, 36, HOFF, 7 * HSZ); srd(k, sW, 36, WFR, WFR_BYTES); srd(k, sO, 6, 0, 2560000)
    def group_dma():
        k(f's_mov_b32 m0, s{sM1}')
        k(f'buffer_load_dwordx4 v{vL16}, s[{sH}:{sH+3}], s{sHoff} offen lds')
        k(f'buffer_load_dwordx4 v{vL16}, s[{sH}:{sH+3}], s{sHoff} offen offset:1024 lds')
        k(f's_mov_b32 m0, s{sM0}')
        k(f'buffer_load_dword v{vX0}, s[{sX}:{sX+3}], s{sXoff} offen lds')
        k(f's_add_u32 s{sM1}, s{sM1}, {GSTR}'); k(f's_add_u32 s{sM0}, s{sM0}, {GSTR}')
        k(f's_add_u32 s{sHoff}, s{sHoff}, 2048'); k(f's_add_u32 s{sXoff}, s{sXoff}, 2048')
    group_dma()
    k(f's_mul_i32 s{sTmp}, s{sWave}, 9216')
    for blk in range(3):
        k(f's_mov_b32 m0, s{sTmp}')
        for i in range(4 if blk < 2 else 1):
            k(f'buffer_load_dwordx4 v{vL16}, s[{sW}:{sW+3}], s{sTmp} offen offset:{1024*i} lds')
        if blk < 2: k(f's_add_u32 s{sTmp}, s{sTmp}, 4096')
    for r in range(4): group_dma()
    vTok, vMask = 9, 10
    k(f'v_and_b32 v{vT0}, 7, v{vQ}'); k(f'v_mul_u32_u24 v{vTok}, {TSTR}, v{vT0}')
    k(f'v_lshl_add_u32 v{vTok}, v{vG}, 7, v{vTok}')
    k(f'v_lshrrev_b32 v{vT1}, 3, v{vQ}')
    k(f'v_lshl_add_u32 v{vTok}, v{vT1}, 3, v{vTok}')
    k(f's_lshl_b32 s{sTmp}, s{sPair}, 4'); k(f's_add_u32 s{sTmp}, s{sTmp}, {TOKB}')
    k(f'v_add_u32 v{vTok}, s{sTmp}, v{vTok}')
    k(f'v_lshrrev_b32 v{vT2}, 1, v{vG}')
    k(f'v_cmp_eq_u32 vcc, v{vT1}, v{vT2}')
    k('s_mov_b64 s[40:41], vcc')
    k(f'v_cndmask_b32 v{vMask}, 0, 1.0, vcc')
    sSC = 42
    k(f's_mul_i32 s{sSC}, s{sPair}, {SCR}')
    k(f's_mov_b32 s{sT}, 0'); k(f's_mov_b32 s{sBuf}, 0')
    vTK = 16
    vCW = 32
    k(f's_cmp_ge_u32 s{sWave}, 4'); k('s_cbranch_scc1 K3_Z')

    def load_weights(base, cbase):
        st(1); k('s_waitcnt vmcnt(12)'); st(2); k('s_barrier'); st(3)
        for i in range(32):
            k(f'ds_read_b128 a[{4*i}:{4*i+3}], v{vL16} offset:{base + 1024*i}')
        k(f'v_add_u32 v{vT0}, {cbase}, v{vL16}')
        for c in range(4):
            k(f'ds_read_b128 v[{vCW+4*c}:{vCW+4*c+3}], v{vT0} offset:{1024*c}')
        k('s_waitcnt lgkmcnt(0)'); st(4); k('s_barrier'); st(5)

    def read_tok():
        for c in range(4):
            for h in range(2):
                k(f'ds_read_b64 v[{vTK+4*c+2*h}:{vTK+4*c+2*h+1}], v{vTok} offset:{(8*c+h)*64}')

    def round_wait(tag):
        k(f's_cmp_eq_u32 s{sT}, 0'); k(f's_cbranch_scc1 {tag}_w0')
        k(f's_cmp_eq_u32 s{sT}, 1'); k(f's_cbranch_scc1 {tag}_w1')
        k(f's_cmp_eq_u32 s{sT}, 2'); k(f's_cbranch_scc1 {tag}_w2')
        k(f's_cmp_eq_u32 s{sT}, 3'); k(f's_cbranch_scc0 {tag}_wd')
        k('s_waitcnt vmcnt(0)'); k(f's_branch {tag}_wd')
        k.label(f'{tag}_w0'); k('s_waitcnt vmcnt(9)'); k(f's_branch {tag}_wd')
        k.label(f'{tag}_w1'); k('s_waitcnt vmcnt(6)'); k(f's_branch {tag}_wd')
        k.label(f'{tag}_w2'); k('s_waitcnt vmcnt(3)')
        k.label(f'{tag}_wd')

    vGw, vGr, vRw, vRr, vHw, vHw2 = 11, 12, 13, 14, 15, 48
    vU = 52
    vAcc = 68
    vGm, vD1, vS, vRk = 80, 84, 88, 92
    vD, vRq, vM, vM2, vF = 96, 97, 98, 99, 100
    vP = 104
    k(f'v_add_u32 v{vGw}, s{sSC}, v{vL16}')
    k(f'v_lshrrev_b32 v{vT0}, 2, v{vQ}'); k(f'v_lshl_add_u32 v{vT0}, v{vT0}, 4, v{vQ}'); k(f'v_lshlrev_b32 v{vT0}, 4, v{vT0}')
    k(f'v_and_b32 v{vT1}, 3, v{vQ}'); k(f'v_lshl_add_u32 v{vT0}, v{vT1}, 2, v{vT0}'); k(f'v_add_u32 v{vGr}, s{sSC}, v{vT0}')
    k(f'v_lshlrev_b32 v{vT0}, 2, v{vQ}'); k(f'v_add_u32 v{vRw}, s{sSC}, v{vT0}')
    k(f'v_lshlrev_b32 v{vT0}, 4, v{vG}'); k(f'v_add_u32 v{vRr}, s{sSC}, v{vT0}')
    k(f'v_lshlrev_b32 v{vT0}, 3, v{vLane}'); k(f'v_add_u32 v{vHw2}, s{sSC}, v{vT0}')
    load_weights(0, 65536)
    k.label('K3_U_LOOP')
    read_tok()
    k('s_waitcnt lgkmcnt(0)')
    def tk(c): return V(vTK + 4 * c, 4)
    for c in range(4):
        k(f'v_mfma_f32_16x16x32_bf16 {V(vGm,4)}, {tk(c)}, {tk(c)}, {"0" if c == 0 else V(vGm,4)}')
    for c in range(4):
        k(f'v_mfma_f32_16x16x32_bf16 {V(vD1,4)}, {V(vCW+4*c,4)}, {tk(c)}, {"0" if c == 0 else V(vD1,4)}')
    def utile(T):
        a = vAcc + 4 * (T % 3)
        for c in range(4):
            k(f'v_mfma_f32_16x16x32_bf16 {V(a,4)}, {A(16*T+4*c,4)}, {tk(c)}, {"0" if c == 0 else V(a,4)}')
    def ucvt(T):
        a = vAcc + 4 * (T % 3); d = vU + 4 * (T // 2) + 2 * (T % 2)
        k(f'v_cvt_pk_bf16_f32 v{d}, v{a}, v{a+1}'); k(f'v_cvt_pk_bf16_f32 v{d+1}, v{a+2}, v{a+3}')
    utile(0); utile(1)
    k(f'ds_write_b128 v{vGw}, {V(vGm,4)}'); k(f'ds_read_b32 v{vD}, v{vGr}')
    utile(2); ucvt(0)
    utile(3); ucvt(1)
    k('s_waitcnt lgkmcnt(0)')
    k(f'v_mul_f32 v{vD}, s{sC128}, v{vD}')
    k(f'v_fma_f32 v{vD}, -v{vD1}, v{vD1}, v{vD}')
    k(f'v_max_f32 v{vD}, 0, v{vD}')
    k(f'v_add_f32 v{vD}, s{sEps}, v{vD}')
    k(f'v_rsq_f32 v{vRq}, v{vD}')
    utile(4); ucvt(2)
    k(f'ds_write_b32 v{vRw}, v{vRq} offset:1024'); k(f'ds_read_b128 {V(vRk,4)}, v{vRr} offset:1024')
    utile(5); ucvt(3)
    utile(6); ucvt(4)
    utile(7); ucvt(5)
    k('s_waitcnt lgkmcnt(0)')
    vC = 108
    for r in range(4): k(f'v_mul_f32 v{vC+r}, v{vRq}, v{vRk+r}')
    ucvt(6); ucvt(7)
    for c in range(4):
        k(f'v_mfma_f32_16x16x32_bf16 {V(vS,4)}, {tk(c)}, {V(vU+4*c,4)}, {"0" if c == 0 else V(vS,4)}')
    k(f'v_add_u32 v{vT0}, s{sBuf}, v{vGw}'); k(f'v_add_u32 v{vT1}, s{sBuf}, v{vHw2}')
    k(f'v_add_u32 v{vTok}, {GSTR}, v{vTok}')
    k(f'ds_write_b64 v{vT1}, {V(vD1,2)} offset:{2048+1024}')
    for r in range(4): k(f'v_mul_f32 v{vS+r}, v{vS+r}, v{vC+r}')
    k(f'v_max3_f32 v{vM}, v{vS}, v{vS+1}, v{vS+2}'); k(f'v_max_f32 v{vM}, v{vM}, v{vS+3}')
    k(f'ds_swizzle_b32 v{vM2}, v{vM} offset:0x401F'); k('s_waitcnt lgkmcnt(0)')
    k(f'v_max_f32 v{vM}, v{vM}, v{vM2}')
    for r in range(4): k(f'v_sub_f32 v{vS+r}, v{vS+r}, v{vM}')
    for r in range(4): k(f'v_exp_f32 v{vS+r}, v{vS+r}')
    k(f'v_add_f32 v{vM}, v{vS}, v{vS+1}'); k(f'v_add_f32 v{vM2}, v{vS+2}, v{vS+3}'); k(f'v_add_f32 v{vM}, v{vM}, v{vM2}')
    k(f'ds_swizzle_b32 v{vM2}, v{vM} offset:0x401F')
    for r in range(4): k(f'v_mul_f32 v{vS+r}, v{vS+r}, v{vRk+r}')
    k('s_waitcnt lgkmcnt(0)')
    k(f'v_add_f32 v{vM}, v{vM}, v{vM2}'); k(f'v_rcp_f32 v{vF}, v{vM}'); k(f'v_mul_f32 v{vF}, v{vF}, v{vMask}')
    for r in range(4): k(f'v_mul_f32 v{vP+r}, v{vS+r}, v{vF}')
    k(f'ds_write_b128 v{vT0}, {V(vP,4)} offset:2048')
    rst(0)
    round_wait('K3U')
    rst(1)
    k(f's_xor_b32 s{sBuf}, s{sBuf}, 1536')
    k(f's_add_u32 s{sT}, s{sT}, 1')
    k('s_waitcnt lgkmcnt(0)'); k('s_barrier')
    k(f's_cmp_lt_u32 s{sT}, 5'); k('s_cbranch_scc1 K3_U_LOOP')
    st(40); st.flush(36, sWave, vT0)
    k('s_endpgm')

    k.label('K3_Z')
    vTr, vBw, vAw, vBr, vOut, vHr, vHr2, vX32 = 11, 12, 13, 14, 15, 48, 49, 50
    vA = 52
    vAx = 84
    vB = 88
    vAcc = 92
    vAccX = 104
    vPf = 108
    vMt = 112
    vDx = 116
    vSq = 120
    vZ0, vZ1 = 124, 125
    vDo = vTK
    ZR = 5120; DUMP = 6144
    k(f'v_and_b32 v{vT0}, 1, v{vG}'); k(f'v_lshlrev_b32 v{vT0}, 2, v{vT0}')
    k(f'v_lshrrev_b32 v{vT1}, 2, v{vQ}'); k(f'v_add_u32 v{vT0}, v{vT0}, v{vT1}')
    k(f'v_mul_u32_u24 v{vTr}, {TSTR}, v{vT0}')
    k(f'v_and_b32 v{vT1}, 3, v{vQ}'); k(f'v_lshl_add_u32 v{vTr}, v{vT1}, 6, v{vTr}')
    k(f'v_lshl_add_u32 v{vTr}, v{vT2}, 3, v{vTr}')
    k(f's_lshl_b32 s{sTmp}, s{sPair}, 4'); k(f's_add_u32 s{sTmp}, s{sTmp}, {TOKB}')
    k(f'v_add_u32 v{vTr}, s{sTmp}, v{vTr}')
    k(f'v_lshlrev_b32 v{vT0}, 2, v{vG}'); k(f'v_sub_u32 v{vT0}, v{vQ}, v{vT0}')
    k(f'v_mov_b32 v{vT1}, 0x3f80'); k(f'v_mov_b32 v{vZ0}, 0x3f800000')
    for i in range(2):
        k(f'v_cmp_eq_u32 vcc, {2*i}, v{vT0}'); k(f'v_cndmask_b32 v{vB+2+i}, 0, v{vT1}, vcc')
        k(f'v_cmp_eq_u32 vcc, {2*i+1}, v{vT0}'); k(f'v_cndmask_b32 v{vB+2+i}, v{vB+2+i}, v{vZ0}, vcc')
    k(f'v_lshlrev_b32 v{vT0}, 4, v{vG}')
    k(f'v_add_u32 v{vT1}, {ZR+448}, v{vT0}'); k(f'v_mov_b32 v{vZ0}, {DUMP}')
    k(f'v_cndmask_b32 v{vBw}, v{vZ0}, v{vT1}, s[40:41]'); k(f'v_add_u32 v{vBw}, s{sSC}, v{vBw}')
    k(f'v_and_b32 v{vT1}, 7, v{vQ}'); k(f'v_sub_u32 v{vT1}, 7, v{vT1}'); k(f'v_lshlrev_b32 v{vT1}, 6, v{vT1}')
    k(f'v_mov_b32 v{vZ0}, 512'); k(f'v_cndmask_b32 v{vT1}, v{vZ0}, v{vT1}, s[40:41]')
    k(f'v_add3_u32 v{vBr}, v{vT1}, v{vT0}, s{sSC}'); k(f'v_add_u32 v{vBr}, {ZR}, v{vBr}')
    k(f'v_lshrrev_b32 v{vT0}, 2, v{vQ}'); k(f'v_lshlrev_b32 v{vT0}, 4, v{vT0}')
    k(f'v_and_b32 v{vT1}, 3, v{vQ}'); k(f'v_lshl_add_u32 v{vT0}, v{vT1}, 1, v{vT0}')
    k(f'v_add_u32 v{vT0}, {ZR+448+8}, v{vT0}'); k(f'v_add_u32 v{vAw}, s{sSC}, v{vT0}')
    k(f'v_lshrrev_b32 v{vT0}, 3, v{vQ}'); k(f'v_lshlrev_b32 v{vOut}, 8, v{vT0}')
    k(f'v_and_b32 v{vT1}, 7, v{vQ}'); k(f'v_lshl_add_u32 v{vOut}, v{vT1}, 5, v{vOut}')
    k(f'v_lshl_add_u32 v{vOut}, v{vG}, 3, v{vOut}')
    k(f's_lshl_b32 s{sTmp}, s{sPair}, 9'); k(f'v_add_u32 v{vOut}, s{sTmp}, v{vOut}')
    k(f'v_add_u32 v{vHr}, s{sSC}, v{vL16}')
    k(f'v_lshlrev_b32 v{vT0}, 3, v{vLane}'); k(f'v_add_u32 v{vHr2}, s{sSC}, v{vT0}')
    k(f'v_xor_b32 v{vX32}, 32, v{vLane}'); k(f'v_lshlrev_b32 v{vX32}, 2, v{vX32}')
    load_weights(32768, 69632)
    for i in range(4): k(f'v_mov_b32 v{vAcc+i}, 0')
    k(f'ds_write_b128 v{vHr}, {V(vAcc,4)} offset:{ZR}')
    k.label('K3_Z_LOOP')
    read_tok()
    for T in range(8):
        k(f'ds_read_b64_tr_b16 v[{vA+4*T+2}:{vA+4*T+3}], v{vTr} offset:{256*T}')
    k('s_waitcnt lgkmcnt(8)')
    for c in range(4):
        k(f'v_mfma_f32_16x16x32_bf16 {V(vAccX,4)}, {tk(c)}, {V(vCW+4*c,4)}, {"0" if c == 0 else V(vAccX,4)}')
    def ztile(T):
        a = vAcc + 4 * (T % 3)
        for c in range(4):
            k(f'v_mfma_f32_16x16x32_bf16 {V(a,4)}, {tk(c)}, {A(16*T+4*c,4)}, {"0" if c == 0 else V(a,4)}')
    def zcvt(T):
        a = vAcc + 4 * (T % 3); d = vA + 4 * T
        k(f'v_cvt_pk_bf16_f32 v{d}, v{a}, v{a+1}'); k(f'v_cvt_pk_bf16_f32 v{d+1}, v{a+2}, v{a+3}')
    ztile(0); ztile(1)
    k(f'v_cvt_pk_bf16_f32 v{vAx}, v{vAccX}, v{vAccX+1}'); k(f'v_cvt_pk_bf16_f32 v{vAx+1}, v{vAccX+2}, v{vAccX+3}')
    for T in range(2, 8):
        ztile(T); zcvt(T - 2)
    k(f'v_add_u32 v{vTok}, {GSTR}, v{vTok}'); k(f'v_add_u32 v{vTr}, {GSTR}, v{vTr}')
    k(f'v_add_u32 v{vT0}, s{sBuf}, v{vHr}'); k(f'v_add_u32 v{vT1}, s{sBuf}, v{vHr2}')
    zcvt(6); zcvt(7)
    rst(0)
    round_wait('K3Z')
    rst(1)
    k('s_waitcnt lgkmcnt(0)'); k('s_barrier')
    rst(2)
    k(f'ds_read_b128 {V(vPf,4)}, v{vT0} offset:2048')
    k(f'ds_read_b64 {V(vMt,2)}, v{vT1} offset:{2048+1024}')
    k('s_waitcnt lgkmcnt(0)')
    k(f'v_cvt_pk_bf16_f32 v{vB}, v{vPf}, v{vPf+1}'); k(f'v_cvt_pk_bf16_f32 v{vB+1}, v{vPf+2}, v{vPf+3}')
    dreg = [vTK, vTK + 4, vTK + 8, vTK + 12, vAcc, vAcc + 4, vAcc + 8, vAccX]
    k(f'v_mfma_f32_16x16x16_bf16 {V(vDx,4)}, {V(vAx,2)}, {V(vB,2)}, 0')
    for T in range(8):
        k(f'v_mfma_f32_16x16x32_bf16 {V(dreg[T],4)}, {V(vA+4*T,4)}, {V(vB,4)}, 0')
    k(f'v_add_f32 v{vMt}, v{vMt}, v{vDx}'); k(f'v_add_f32 v{vMt+1}, v{vMt+1}, v{vDx+1}')
    for T in range(8):
        for r in range(4):
            d = dreg[T] + r
            if T == 0: k(f'v_mul_f32 v{vSq+r}, v{d}, v{d}')
            else: k(f'v_fmac_f32 v{vSq+r}, v{d}, v{d}')
    k(f'v_add_f32 v{vSq}, v{vSq}, v{vSq+1}'); k(f'v_add_f32 v{vSq+2}, v{vSq+2}, v{vSq+3}'); k(f'v_add_f32 v{vSq}, v{vSq}, v{vSq+2}')
    k(f'ds_swizzle_b32 v{vZ0}, v{vSq} offset:0x401F'); k('s_waitcnt lgkmcnt(0)')
    k(f'v_add_f32 v{vSq}, v{vSq}, v{vZ0}')
    k(f'ds_bpermute_b32 v{vZ0}, v{vX32}, v{vSq}')
    k(f'v_mul_f32 v{vMt+1}, s{sL2e}, v{vMt+1}')
    k('s_waitcnt lgkmcnt(0)')
    k(f'v_add_f32 v{vSq}, v{vSq}, v{vZ0}')
    k(f'v_mul_f32 v{vSq}, s{sC128}, v{vSq}')
    k(f'v_fma_f32 v{vSq}, -v{vMt}, v{vMt}, v{vSq}')
    k(f'v_max_f32 v{vSq}, 0, v{vSq}'); k(f'v_add_f32 v{vSq}, s{sEps}, v{vSq}')
    k(f'v_rsq_f32 v{vSq}, v{vSq}')
    k(f'v_mul_f32 v{vZ0}, v{vMt+1}, v{vSq}')
    k(f'v_mov_b32 v{vZ1}, v{vZ0}')
    allreduce8(k, 'v_max_f32', vZ1)
    k(f'v_sub_f32 v{vZ0}, v{vZ0}, v{vZ1}'); k(f'v_exp_f32 v{vZ0}, v{vZ0}')
    k(f'v_mov_b32 v{vZ1}, v{vZ0}')
    allreduce8(k, 'v_add_f32', vZ1)
    k(f'v_rcp_f32 v{vZ1}, v{vZ1}'); k(f'v_mul_f32 v{vZ0}, v{vZ0}, v{vZ1}')
    for r in range(4): k(f'v_mul_f32 v{vPf+r}, v{vPf+r}, v{vZ0}')
    k(f'v_cvt_pk_bf16_f32 v{vZ1}, v{vZ0}, v{vZ0}')
    k(f'ds_write_b16 v{vAw}, v{vZ1}')
    for m in ('quad_perm:[1,0,3,2]', 'quad_perm:[2,3,0,1]', 'row_half_mirror'):
        for r in range(4):
            k(f'v_add_f32_dpp v{vPf+r}, v{vPf+r}, v{vPf+r} {m} row_mask:0xf bank_mask:0xf')
    k(f'v_cvt_pk_bf16_f32 v{vMt}, v{vPf}, v{vPf+1}'); k(f'v_cvt_pk_bf16_f32 v{vMt+1}, v{vPf+2}, v{vPf+3}')
    k(f'ds_write_b64 v{vBw}, {V(vMt,2)}')
    for T in range(8):
        k(f'ds_read_b128 {V(dreg[T],4)}, v{vBr} offset:{64*T}')
    for T in range(8):
        k(f's_waitcnt lgkmcnt({7-T})')
        k(f'v_mfma_f32_16x16x32_bf16 {V(vDx,4)}, {V(vA+4*T,4)}, {V(dreg[T],4)}, {"0" if T == 0 else V(vDx,4)}')
    rst(3)
    k(f's_xor_b32 s{sBuf}, s{sBuf}, 1536')
    k(f's_add_u32 s{sT}, s{sT}, 1')
    k(f'v_cvt_pk_bf16_f32 v{vMt}, v{vDx}, v{vDx+1}'); k(f'v_cvt_pk_bf16_f32 v{vMt+1}, v{vDx+2}, v{vDx+3}')
    k(f'buffer_store_dwordx2 {V(vMt,2)}, v{vOut}, s[{sO}:{sO+3}], s{sOutOff} offen')
    k(f's_add_u32 s{sOutOff}, s{sOutOff}, 2048')
    k(f's_cmp_lt_u32 s{sT}, 5'); k('s_cbranch_scc1 K3_Z_LOOP')
    if st.on: k('s_waitcnt vmcnt(0)')
    st(40); st.flush(36, sWave, vT0)
    k.label('K3_END')
    k('s_endpgm')
    return dict(k=k, grid=250, block=512, lds=K3_LDS, vgpr=256, sgpr=56, accum=128)
```

```python
import sys
from common import *
from k1 import gen_k1
from k2 import gen_k2
from k3 import gen_k3

def build(launch=('k1', 'k2', 'k3'), opts=None):
    opts = opts or {}
    hdr = open('cdna_kernels/%s.s.ref' % NAME).read().split('\n')
    hdr = [l for l in hdr if l.startswith(';') and '@launch' not in l and 'Override launch' not in l and 'grid=ceil' not in l]
    ks = {'k1': gen_k1(opts), 'k2': gen_k2(opts), 'k3': gen_k3(opts)}
    out = list(hdr)
    k0 = Kern(); k0('s_endpgm')
    ks['k0'] = dict(k=k0, grid=256, block=64, lds=0, vgpr=8, sgpr=8, accum=8)
    allk = [n for n in ('k1', 'k2', 'k3', 'k0') if n in launch]
    for n in launch:
        g = ks[n]
        out.append('; @launch kernel=nag_%s_kernel grid=(%d,1,1) block=(%d,1,1) lds=%d' % (n, g['grid'], g['block'], g['lds']))
    out.append('.amdgcn_target "amdgcn-amd-amdhsa--gfx950"')
    out.append('.text')
    for n in allk:
        g = ks[n]
        nm = 'nag_%s_kernel' % n
        out += ['.globl %s' % nm, '.p2align 8', '.type %s,@function' % nm, nm + ':']
        g['k'].finalize()
        out.append(g['k'].text())
    out += ['.section .rodata,"a"']
    for n in allk:
        g = ks[n]
        out += ['.p2align 6', desc('nag_%s_kernel' % n, g['vgpr'], g['sgpr'], g['accum'])]
    return '\n'.join(out) + '\n'

if __name__ == '__main__':
    path = sys.argv[1] if len(sys.argv) > 1 else 'cdna_kernels/%s.s' % NAME
    opts = dict(a.split('=') for a in sys.argv[2:] if '=' in a)
    launch = tuple(opts.pop('launch', 'k1,k2,k3').split(','))
    open(path, 'w').write(build(launch, opts))
    print('wrote', path)
```

```python
import sys
from asmlib import *

NAME = 'gather_scatter__hybrid_graph_tf_nagphormer__graph'
N = 10000
HOPF = 0
BLDF = 32768
XCCF = 65536
ZERO_BYTES = 66560
STAT = 69632
WFR  = 73728
WFR_BYTES = 73728
CELL = 1 << 20
GOFF = 2 << 20
QS = 81920
GSZ = 32 * QS
NGBUF = 10
ELL = GOFF + NGBUF * GSZ
ELLB = 25600
HOFF = ELL + 256 * ELLB
HSZ = 2560000
WS_END = HOFF + 7 * HSZ
CAP = 40
EPS = 1e-5

import struct
def f2u(x): return struct.unpack('<I', struct.pack('<f', x))[0]
def hx(x): return '0x%08x' % (x & 0xffffffff)

def srd(k, s, base, off, nrec):
    if off == 0:
        k('s_mov_b32 s%d, s%d' % (s, base)); k('s_mov_b32 s%d, s%d' % (s + 1, base + 1))
    else:
        o = off if isinstance(off, str) else hx(off)
        k('s_add_u32 s%d, s%d, %s' % (s, base, o)); k('s_addc_u32 s%d, s%d, 0' % (s + 1, base + 1))
    k('s_mov_b32 s%d, %s' % (s + 2, hx(nrec))); k('s_mov_b32 s%d, 0x20000' % (s + 3))

def desc(name, vgpr, sgpr, accum):
    return f""".amdhsa_kernel {name}
  .amdhsa_next_free_vgpr {vgpr}
  .amdhsa_next_free_sgpr {sgpr}
  .amdhsa_accum_offset {accum}
  .amdhsa_group_segment_fixed_size 0
  .amdhsa_kernarg_size 96
  .amdhsa_user_sgpr_count 2
  .amdhsa_user_sgpr_kernarg_segment_ptr 1
  .amdhsa_system_sgpr_workgroup_id_x 1
.end_amdhsa_kernel"""

def allreduce16(k, op, v):
    for m in ('quad_perm:[1,0,3,2]', 'quad_perm:[2,3,0,1]', 'row_half_mirror', 'row_mirror'):
        k(f'{op}_dpp v{v}, v{v}, v{v} {m} row_mask:0xf bank_mask:0xf')

def allreduce8(k, op, v):
    for m in ('quad_perm:[1,0,3,2]', 'quad_perm:[2,3,0,1]', 'row_half_mirror'):
        k(f'{op}_dpp v{v}, v{v}, v{v} {m} row_mask:0xf bank_mask:0xf')

def xrow_reduce(k, op, v, t):
    k(f'v_mov_b32 v{t}, v{v}'); k(f'v_permlane16_swap_b32 v{v}, v{t}'); k(f'{op} v{v}, v{v}, v{t}')
    k(f'v_mov_b32 v{t}, v{v}'); k(f'v_permlane32_swap_b32 v{v}, v{t}'); k(f'{op} v{v}, v{v}, v{t}')


STMP = 240 << 20
class Stamper:
    def __init__(self, k, on, v, s, kid):
        self.k, self.on, self.v, self.s, self.kid = k, on, v, s, kid
    def init(self):
        if self.on: self.k(f'v_mov_b32 v{self.v}, 0')
    def __call__(self, idx):
        if not self.on: return
        k, s = self.k, self.s
        k(f's_memrealtime s[{s}:{s+1}]'); k('s_waitcnt lgkmcnt(0)')
        k(f'v_writelane_b32 v{self.v}, s{s}, {idx}')
    def clk(self, idx):
        if not self.on: return
        k, s = self.k, self.s
        k(f's_memtime s[{s}:{s+1}]'); k('s_waitcnt lgkmcnt(0)')
        k(f'v_writelane_b32 v{self.v}, s{s}, {idx}')
    def flush(self, wsreg, wave, tmpv):
        if not self.on: return
        k, s = self.k, self.s
        k('s_mov_b64 exec, -1')
        k(f's_lshl_b32 s{s}, s2, 4'); k(f's_add_u32 s{s}, s{s}, s{wave}'); k(f's_lshl_b32 s{s}, s{s}, 8')
        k(f's_add_u32 s{s}, s{s}, {STMP + self.kid * (1 << 20)}')
        k(f's_add_u32 s{s+2}, s{wsreg}, s{s}'); k(f's_addc_u32 s{s+3}, s{wsreg+1}, 0')
        k(f'v_mbcnt_lo_u32_b32 v{tmpv}, -1, 0'); k(f'v_mbcnt_hi_u32_b32 v{tmpv}, -1, v{tmpv}'); k(f'v_lshlrev_b32 v{tmpv}, 2, v{tmpv}')
        k(f'global_store_dword v{tmpv}, v{self.v}, s[{s+2}:{s+3}]')
```

```python
from km_common import *
import math
SCALE = LOG2E / math.sqrt(128.0)

def publish(c, soff_reg, payload, tag, flavour=' sc1'):
    k = c.k
    k(f's_cmp_lg_u32 s{c.sWave}, 0'); k(f's_cbranch_scc1 {tag}')
    k(f's_add_u32 s{c.sCnt}, s{c.sTag0}, {payload}')
    k(f'v_mov_b32 v4, s{c.sCnt}'); k(f'v_mov_b32 v5, s{c.sTag1}'); k('v_mov_b32 v3, 0')
    k('s_mov_b64 exec, 1')
    k(f'buffer_store_dwordx2 v[4:5], v3, s[{c.sF}:{c.sF+3}], s{soff_reg} offen{flavour}')
    k('s_mov_b64 exec, -1')
    k.label(tag)

def transposer(c):
    k, st = c.k, c.st
    QP = 528
    sT, sT2 = c.sT, c.sT2
    srd(k, sT2, c.sWS, GOFF, GSZ)
    k(f's_lshl_b32 s{c.sTmp}, s2, 14'); k(f's_lshl_b32 s{c.sTmp2}, s{c.sWave}, 11'); k(f's_add_u32 s{c.sTmp}, s{c.sTmp}, s{c.sTmp2}')
    k(f'buffer_load_dwordx4 v[64:67], v2, s[{c.sX}:{c.sX+3}], s{c.sTmp} offen')
    k(f'buffer_load_dwordx4 v[68:71], v2, s[{c.sX}:{c.sX+3}], s{c.sTmp} offen offset:1024')
    k('v_lshrrev_b32 v3, 4, v1'); k('v_lshlrev_b32 v4, 1, v3')
    k(f's_lshl_b32 s{c.sTmp}, s2, 7'); k(f's_lshl_b32 s{c.sTmp2}, s{c.sWave}, 4'); k(f's_add_u32 s{c.sTmp}, s{c.sTmp}, s{c.sTmp2}')
    k(f'buffer_load_ushort v72, v4, s[{sT}:{sT+3}], s{c.sTmp} offen')
    k(f'buffer_load_ushort v73, v4, s[{sT}:{sT+3}], s{c.sTmp} offen offset:8')
    c.early_setup()
    k('v_and_b32 v5, 15, v1'); k(f'v_mul_u32_u24 v5, {2*QP}, v5'); k('v_lshrrev_b32 v3, 4, v1'); k('v_lshl_add_u32 v5, v3, 3, v5')
    k(f's_lshl_b32 s{c.sTmp}, s{c.sWave}, 6'); k(f'v_add_u32 v5, s{c.sTmp}, v5')
    k('v_lshrrev_b32 v3, 5, v1'); k(f's_lshl_b32 s{c.sTmp}, s{c.sWave}, 2'); k(f'v_add_u32 v3, s{c.sTmp}, v3')
    k('v_and_b32 v4, 31, v1'); k('v_lshlrev_b32 v4, 4, v4')
    k(f'v_mul_u32_u24 v6, {QP}, v3'); k('v_add_u32 v6, v6, v4')
    k(f's_mov_b32 s{c.sTmp}, {QS}'); k(f'v_mul_lo_u32 v7, s{c.sTmp}, v3'); k('v_add_u32 v7, v7, v4')
    st(1)
    for i in range(2):
        k(f's_waitcnt vmcnt({1-i})')
        k(f'v_lshlrev_b32 v{72+i}, 16, v{72+i}')
        for j in range(4):
            r = 64 + 4 * i + j
            k(f'v_lshlrev_b32 v74, 16, v{r}'); k(f'v_and_b32 v75, 0xffff0000, v{r}')
            k(f'v_mul_f32 v74, v74, v{72+i}'); k(f'v_mul_f32 v75, v75, v{72+i}')
            k(f'v_cvt_pk_bf16_f32 v{r}, v74, v75')
        k(f'ds_write_b64 v5, v[{64+4*i}:{65+4*i}] offset:{32*i}')
        k(f'ds_write_b64 v5, v[{66+4*i}:{67+4*i}] offset:{32*i+QP}')
    st(2)
    k('s_waitcnt lgkmcnt(0)'); k('s_barrier')
    k('ds_read_b128 v[64:67], v6'); k(f'ds_read_b128 v[68:71], v6 offset:{2*QP}')
    k(f's_lshl_b32 s{c.sTmp}, s2, 9'); k(f's_add_u32 s{c.sTmp2}, s{c.sTmp}, {2*QS}')
    k('s_waitcnt lgkmcnt(1)')
    k(f'buffer_store_dwordx4 v[64:67], v7, s[{sT2}:{sT2+3}], s{c.sTmp} offen sc1')
    k('s_waitcnt lgkmcnt(0)')
    k(f'buffer_store_dwordx4 v[68:71], v7, s[{sT2}:{sT2+3}], s{c.sTmp2} offen sc1')
    c.make_tag()
    k(f's_lshl_b32 s{c.sTmp}, s2, 6'); k(f's_add_u32 s{c.sTmp}, s{c.sTmp}, {TF}')
    k('s_waitcnt vmcnt(0)'); k('s_barrier')
    publish(c, c.sTmp, 0, 'KA_TP')
    st(3)

def producer(c):
    k, st = c.k, c.st
    sS, sD = c.sT2, c.sGW
    CNT = 32768
    k('v_lshlrev_b32 v20, 4, v0')
    k(f's_sub_u32 s{c.sTmp3}, s2, 192'); k(f's_mul_i32 s{c.sTmp}, s{c.sTmp3}, 10000'); k(f's_add_u32 s{c.sTmp2}, s{c.sTmp}, 8192')
    srd(k, sS, 66, 0, 640000); srd(k, sD, 68, 0, 640000)
    vD, vS = 64, 72
    k(f'buffer_load_dwordx4 v[{vD}:{vD+3}], v20, s[{sD}:{sD+3}], s{c.sTmp} offen')
    k(f'buffer_load_dwordx4 v[{vS}:{vS+3}], v20, s[{sS}:{sS+3}], s{c.sTmp} offen')
    k(f'v_cmp_gt_u32 s[64:65], 113, v0' if False else 'v_cmp_gt_u32 vcc, 113, v0'); k('s_mov_b64 s[64:65], vcc')
    k(f's_cmp_ge_u32 s{c.sWave}, 2'); k('s_cbranch_scc1 KA_P1')
    k('s_mov_b64 exec, s[64:65]')
    k(f'buffer_load_dwordx4 v[{vD+4}:{vD+7}], v20, s[{sD}:{sD+3}], s{c.sTmp2} offen')
    k(f'buffer_load_dwordx4 v[{vS+4}:{vS+7}], v20, s[{sS}:{sS+3}], s{c.sTmp2} offen')
    k('s_mov_b64 exec, -1')
    k.label('KA_P1')
    for i in range(4): k(f'v_mov_b32 v{80+i}, -1')
    for n in range(4): k(f'ds_write_b128 v20, v[80:83] offset:{8192*n}')
    k('v_mov_b32 v84, 0'); k('v_lshlrev_b32 v85, 2, v0')
    k(f'ds_write_b32 v85, v84 offset:{CNT}')
    c.early_setup()
    k('v_mov_b32 v84, 1'); k('v_mov_b32 v86, 0')
    k('s_waitcnt lgkmcnt(0)'); k('s_barrier')
    st(1)
    vP, vE, vA = 88, 96, 104
    def half(b):
        for e in range(b, b + 4):
            k(f'v_lshrrev_b32 v{vA+e}, 6, v{vD+e}')
            k(f'v_lshlrev_b32 v85, 2, v{vA+e}')
            k(f'ds_add_rtn_u32 v{vP+e}, v85, v84 offset:{CNT}')
            k(f'v_sub_u32 v85, v{vS+e}, v{vD+e}'); k('v_and_b32 v85, 31, v85')
            k(f'v_lshl_or_b32 v{vE+e}, v85, 16, v{vS+e}')
            k(f'v_and_b32 v85, 63, v{vD+e}'); k(f'v_lshl_or_b32 v{vE+e}, v85, 23, v{vE+e}')
            k(f'v_mul_u32_u24 v{vA+e}, {CROW}, v{vA+e}')
        k(f's_mov_b64 s[66:67], exec')
        for e in range(b, b + 4):
            k('s_waitcnt lgkmcnt(3)')
            k(f'v_lshl_add_u32 v{vA+e}, v{vP+e}, 2, v{vA+e}')
            k(f'v_max_u32 v86, v86, v{vP+e}')
            k(f'v_cmp_gt_u32 vcc, {CCAP}, v{vP+e}')
            k('s_mov_b64 exec, vcc')
            k(f'ds_write_b32 v{vA+e}, v{vE+e}')
            k('s_mov_b64 exec, s[66:67]')
    k('s_waitcnt vmcnt(2)')
    k(f's_cmp_lt_u32 s{c.sWave}, 2'); k('s_cbranch_scc1 KA_P2')
    k('s_waitcnt vmcnt(0)')
    k.label('KA_P2')
    st(2)
    half(0)
    k(f's_cmp_ge_u32 s{c.sWave}, 2'); k('s_cbranch_scc1 KA_P3')
    k('s_waitcnt vmcnt(0)')
    k('s_mov_b64 exec, s[64:65]')
    half(4)
    k('s_mov_b64 exec, -1')
    k.label('KA_P3')
    k(f'v_cmp_le_u32 vcc, {CCAP}, v86'); k(f'v_mov_b32 v85, {CNT + 2044}')
    k('s_mov_b64 exec, vcc'); k('ds_write_b32 v85, v84'); k('s_mov_b64 exec, -1')
    k('s_waitcnt lgkmcnt(0)'); k('s_barrier')
    for n in range(4): k(f'ds_read_b128 v[{64+4*n}:{67+4*n}], v20 offset:{8192*n}')
    k('ds_read_b32 v86, v85')
    k(f's_mul_i32 s{c.sTmp}, s{c.sTmp3}, {CSTR}'); k(f's_add_u32 s{c.sTmp}, s{c.sTmp}, {CELL}')
    for n in range(4):
        k(f's_waitcnt lgkmcnt({4-n})')
        if n == 3: k(f'v_cmp_gt_u32 vcc, {CIMG//16-1536}, v0'); k('s_and_saveexec_b64 s[66:67], vcc'); k('s_cbranch_execz KA_P4')
        k(f'buffer_store_dwordx4 v[{64+4*n}:{67+4*n}], v20, s[{c.sF}:{c.sF+3}], s{c.sTmp} offen sc1')
        if n < 3: k(f's_add_u32 s{c.sTmp}, s{c.sTmp}, 8192')
    k.label('KA_P4')
    k('s_mov_b64 exec, -1')
    c.make_tag()
    k(f'v_readfirstlane_b32 s{c.sTmp2}, v86')
    k(f's_lshl_b32 s{c.sTmp}, s{c.sTmp3}, 6'); k(f's_add_u32 s{c.sTmp}, s{c.sTmp}, {PF}')
    k('s_waitcnt vmcnt(0)'); k('s_barrier')
    publish(c, c.sTmp, f's{c.sTmp2}', 'KA_PP')
    st(3)

def weights(c):
    k, st = c.k, c.st
    sA, sB = c.sT2, c.sGW
    vQ, vG = 20, 21
    SUMB = 65536
    COL, C0, C1, WP, KK = [512 * i for i in range(5)]
    k('s_cmp_eq_u32 s2, 158')
    k('s_cmov_b32 s72, s76'); k('s_cmov_b32 s73, s77'); k('s_cmov_b32 s74, s78'); k('s_cmov_b32 s75, s79')
    srd(k, sA, 72, 0, 32768); srd(k, sB, 74, 0, 32768); srd(k, 68, 80, 0, 256)
    k(f's_lshl_b32 s{c.sTmp}, s{c.sWave}, 12')
    for i in range(4): k(f'buffer_load_dwordx4 {V(64+4*i,4)}, v2, s[{sA}:{sA+3}], s{c.sTmp} offen offset:{1024*i}')
    for i in range(4): k(f'buffer_load_dwordx4 {V(80+4*i,4)}, v2, s[{sB}:{sB+3}], s{c.sTmp} offen offset:{1024*i}')
    k('v_lshlrev_b32 v3, 2, v1'); k('buffer_load_dword v26, v3, s[68:71], 0 offen')
    c.early_setup()
    k(f'v_and_b32 v{vQ}, 15, v1'); k(f'v_lshrrev_b32 v{vG}, 4, v1')
    k('v_lshlrev_b32 v3, 2, v0'); k(f'v_add_u32 v3, {SUMB}, v3'); k('v_mov_b32 v4, 0'); k(f'v_mov_b32 v5, {hx(f2u(1.0/128))}')
    k('ds_write_b32 v3, v4')
    k('ds_write_b32 v3, v5 offset:2048')
    k(f'v_lshl_add_u32 v7, v{vG}, 8, s{c.sTmp}')
    k(f'v_lshlrev_b32 v6, 1, v{vG}')
    k('s_cmp_eq_u32 s2, 158'); k('s_cselect_b64 s[76:77], -1, 0')
    for i in range(4):
        k(f'v_add_u32 v3, {4*i}, v{vG}'); k(f'v_add_u32 v4, {8*(i//2)}, v6')
        k('v_cndmask_b32 v4, v3, v4, s[76:77]')
        k(f'v_xor_b32 v3, v3, v{vQ}'); k(f'v_xor_b32 v4, v4, v{vQ}')
        k(f'v_lshl_add_u32 v{22+i}, v3, 4, v7'); k(f'v_lshl_add_u32 v{28+i}, v4, 4, v7')
    vAf, vBf, vDm = 64, 128, 80
    vSt = 27
    k(f'v_lshrrev_b32 v3, 1, v{vG}'); k(f'v_lshlrev_b32 v{vSt}, 8, v3')
    k(f'v_and_b32 v3, 1, v{vG}'); k(f'v_lshl_add_u32 v{vSt}, v3, 3, v{vSt}')
    k(f's_lshl_b32 s{c.sTmp2}, s{c.sWave}, 9'); k(f'v_add_u32 v{vSt}, s{c.sTmp2}, v{vSt}')
    k(f'v_lshlrev_b32 v112, 2, v{vQ}'); k(f'v_add_u32 v112, {SUMB}, v112')
    k('v_lshlrev_b32 v113, 3, v1'); k(f'v_add_u32 v113, {SUMB}, v113')
    k(f's_mov_b32 s72, {hx(f2u(1.0/128))}'); k(f's_mov_b32 s73, {hx(f2u(SCALE))}')
    for i in range(4):
        k(f's_waitcnt vmcnt({8-i})'); k(f'ds_write_b128 v{22+i}, {V(64+4*i,4)} offset:{1024*i}')
    for i in range(4):
        k(f's_waitcnt vmcnt({4-i})'); k(f'ds_write_b128 v{28+i}, {V(80+4*i,4)} offset:{32768+1024*i}')
    k(f'v_xor_b32 v3, v{vG}, v{vQ}'); k('v_lshlrev_b32 v3, 4, v3'); k(f'v_lshl_add_u32 v22, v{vQ}, 8, v3')
    for cc in range(1, 4): k(f'v_xor_b32 v{22+cc}, {cc<<6}, v22')
    k('s_waitcnt vmcnt(0)')
    k('v_lshlrev_b32 v6, 16, v26'); k('v_and_b32 v7, 0xffff0000, v26')
    k('v_add_f32 v26, v6, v7'); allreduce16(k, 'v_add_f32', 26); xrow_reduce(k, 'v_add_f32', 26, 3)
    k('v_fma_f32 v6, -v26, s72, v6'); k('v_fma_f32 v7, -v26, s72, v7')
    k('s_waitcnt lgkmcnt(0)'); k('s_barrier')
    st(1)
    k(f'ds_write_b64 v113, v[6:7] offset:{WP}')
    for cc in range(4):
        k(f'v_add_u32 v3, s{c.sTmp}, v{22+cc}'); k(f'ds_read_b128 {V(vAf+4*cc,4)}, v3')
    k('s_cmp_eq_u32 s2, 158'); k('s_cbranch_scc1 KW_TR')
    for ct in range(8):
        for cc in range(4):
            k(f'ds_read_b128 {V(vBf+16*ct+4*cc,4)}, v{22+cc} offset:{32768+4096*ct}')
    k('s_branch KW_MM')
    k.label('KW_TR')
    k(f'v_lshrrev_b32 v3, 2, v{vQ}')
    k(f'v_and_b32 v4, 1, v{vG}'); k('v_lshlrev_b32 v4, 3, v4'); k('v_lshl_add_u32 v4, v3, 1, v4')
    k(f'v_bfe_u32 v5, v{vQ}, 1, 1'); k('v_xor_b32 v4, v4, v5'); k('v_lshlrev_b32 v4, 4, v4')
    k(f'v_lshl_add_u32 v3, v{vG}, 3, v3'); k('v_lshl_add_u32 v4, v3, 8, v4')
    k(f'v_and_b32 v5, 1, v{vQ}'); k('v_lshl_add_u32 v22, v5, 3, v4')
    for ct in range(8):
        k(f'v_xor_b32 v{28+ct%2}, {ct<<5}, v22')
        for h in range(2):
            for cc in range(4):
                k(f'ds_read_b64_tr_b16 {V(vBf+16*ct+4*cc+2*h,2)}, v{28+ct%2} offset:{32768+8192*cc+1024*h}')
    k.label('KW_MM')
    k('s_waitcnt lgkmcnt(0)')
    st(4)
    for ct in range(8):
        for cc in range(4):
            d = V(vDm + 4 * ct, 4)
            k(f'v_mfma_f32_16x16x32_bf16 {d}, {V(vAf+4*cc,4)}, {V(vBf+16*ct+4*cc,4)}, {"0" if cc == 0 else d}')
    for ct in range(8):
        d = vDm + 4 * ct
        k(f'v_add_f32 v3, v{d}, v{d+1}'); k(f'v_add_f32 v4, v{d+2}, v{d+3}'); k(f'v_add_f32 v{116+ct}, v3, v4')
    for i in range(4): k(f'v_permlane32_swap_b32 v{116+i}, v{120+i}')
    for i in range(4): k(f'v_add_f32 v{116+i}, v{116+i}, v{120+i}')
    for i in range(2): k(f'v_permlane16_swap_b32 v{116+i}, v{118+i}')
    for i in range(2): k(f'v_add_f32 v{116+i}, v{116+i}, v{118+i}')
    k(f'v_lshl_add_u32 v3, v{vG}, 7, v112')
    for i in range(2): k(f'ds_add_f32 v3, v{116+i} offset:{COL+64*i}')
    st(7)
    def rowsum(src, dst):
        for r in range(4):
            k(f'v_add_f32 v{dst+r}, v{src(0,r)}, v{src(1,r)}')
            for ct in range(2, 8): k(f'v_add_f32 v{dst+r}, v{dst+r}, v{src(ct,r)}')
        for m in ('quad_perm:[1,0,3,2]', 'quad_perm:[2,3,0,1]', 'row_half_mirror', 'row_mirror'):
            for r in range(4): k(f'v_add_f32_dpp v{dst+r}, v{dst+r}, v{dst+r} {m} row_mask:0xf bank_mask:0xf')
    k('s_cmp_eq_u32 s2, 158'); k('s_cbranch_scc1 KW_W2')
    rowsum(lambda ct, r: vDm + 4 * ct + r, 64)
    k('s_waitcnt lgkmcnt(0)'); k('s_barrier')
    st(2)
    k(f'ds_read_b64 v[6:7], v113 offset:{COL}')
    for ct in range(8): k(f'ds_read_b32 v{116+ct}, v112 offset:{COL+64*ct}')
    k('s_waitcnt lgkmcnt(0)')
    k('v_add_f32 v6, v6, v7'); allreduce16(k, 'v_add_f32', 6); xrow_reduce(k, 'v_add_f32', 6, 7)
    for r in range(4): k(f'v_fma_f32 v{64+r}, -v6, s72, v{64+r}')
    k(f'v_bfe_u32 v3, v{vQ}, 2, 1'); k('v_lshlrev_b32 v3, 12, v3')
    k(f'v_lshrrev_b32 v4, 3, v{vQ}'); k('v_lshl_add_u32 v3, v4, 6, v3')
    k(f'v_and_b32 v4, 3, v{vQ}'); k('v_lshl_add_u32 v3, v4, 4, v3'); k(f'v_add_u32 v3, v3, v{vSt}')
    for ct in range(8):
        for r in range(4):
            d = vDm + 4 * ct + r
            k(f'v_add_f32 v4, v{64+r}, v{116+ct}'); k(f'v_fma_f32 v{d}, -v4, s72, v{d}'); k(f'v_mul_f32 v{d}, s73, v{d}')
        k(f'v_cvt_pk_bf16_f32 v{128+2*ct}, v{vDm+4*ct}, v{vDm+4*ct+1}'); k(f'v_cvt_pk_bf16_f32 v{129+2*ct}, v{vDm+4*ct+2}, v{vDm+4*ct+3}')
        k(f'ds_write_b64 v3, {V(128+2*ct,2)} offset:{8192*(ct//2)+128*(ct%2)}')
    k(f's_mov_b32 s{c.sTmp3}, {WFR}')
    k('s_branch KW_OUT')
    k.label('KW_W2')
    k('s_waitcnt lgkmcnt(0)'); k('s_barrier')
    for ct in range(8): k(f'ds_read_b32 v{116+ct}, v112 offset:{COL+64*ct}')
    for ct in range(8): k(f'ds_read_b32 v{64+ct}, v112 offset:{WP+64*ct}')
    k(f'v_lshlrev_b32 v3, 4, v{vQ}'); k(f'v_add_u32 v3, v3, v{vSt}')
    k('s_waitcnt lgkmcnt(0)')
    for ct in range(8):
        for r in range(4):
            d = vDm + 4 * ct + r
            k(f'v_fma_f32 v{d}, -v{116+ct}, s72, v{d}'); k(f'v_mul_f32 v{160+4*ct+r}, v{d}, v{64+ct}')
        k(f'v_cvt_pk_bf16_f32 v{128+2*ct}, v{vDm+4*ct}, v{vDm+4*ct+1}'); k(f'v_cvt_pk_bf16_f32 v{129+2*ct}, v{vDm+4*ct+2}, v{vDm+4*ct+3}')
        k(f'ds_write_b64 v3, {V(128+2*ct,2)} offset:{4096*ct}')
    rowsum(lambda ct, r: vDm + 4 * ct + r, 72)
    rowsum(lambda ct, r: 160 + 4 * ct + r, 76)
    for r in range(4): k(f'v_mul_f32 v{72+r}, s72, v{72+r}')
    k(f'v_lshlrev_b32 v3, 4, v{vG}'); k(f's_lshl_b32 s{c.sTmp2}, s{c.sWave}, 6'); k(f's_add_u32 s{c.sTmp2}, s{c.sTmp2}, {SUMB}'); k(f'v_add_u32 v3, s{c.sTmp2}, v3')
    k(f'ds_write_b128 v3, v[72:75] offset:{C0}'); k(f'ds_write_b128 v3, v[76:79] offset:{C1}')
    k(f's_mov_b32 s{c.sTmp3}, {WFR+32768}')
    k.label('KW_OUT')
    k('s_waitcnt lgkmcnt(0)'); k('s_barrier')
    k(f'v_add_u32 v3, s{c.sTmp}, v2'); k(f's_add_u32 s{c.sTmp3}, s{c.sTmp3}, s{c.sTmp}')
    for i in range(4): k(f'ds_read_b128 {V(64+4*i,4)}, v3 offset:{1024*i}')
    for i in range(4):
        k(f's_waitcnt lgkmcnt({3-i})')
        k(f'buffer_store_dwordx4 {V(64+4*i,4)}, v2, s[{c.sF}:{c.sF+3}], s{c.sTmp3} offen offset:{1024*i} sc1')
    k('s_cmp_eq_u32 s2, 158'); k('s_cbranch_scc0 KW_FIN')
    k(f's_cmp_ge_u32 s{c.sWave}, 4'); k('s_cbranch_scc1 KW_FIN')
    k(f'v_and_b32 v4, 3, v{vQ}')
    k(f'v_mov_b32 v3, {KK}'); k(f'v_mov_b32 v5, {WP}'); k(f'v_mov_b32 v6, {C0}'); k(f'v_mov_b32 v7, {C1}')
    for t, r in ((1, 5), (2, 6), (3, 7)):
        k(f'v_cmp_eq_u32 vcc, {t}, v4'); k(f'v_cndmask_b32 v3, v3, v{r}, vcc')
    k(f's_lshl_b32 s{c.sTmp2}, s{c.sWave}, 7'); k(f's_add_u32 s{c.sTmp2}, s{c.sTmp2}, {SUMB}')
    k(f'v_lshl_add_u32 v3, v{vG}, 5, v3'); k(f'v_add_u32 v3, s{c.sTmp2}, v3')
    k('ds_read_b128 v[80:83], v3'); k('ds_read_b128 v[84:87], v3 offset:16')
    k(f's_lshl_b32 s{c.sTmp2}, s{c.sWave}, 10'); k(f's_add_u32 s{c.sTmp2}, s{c.sTmp2}, {WFR+65536}')
    k('s_waitcnt lgkmcnt(0)')
    for j in range(4): k(f'v_cvt_pk_bf16_f32 v{88+j}, v{80+2*j}, v{81+2*j}')
    k(f'buffer_store_dwordx4 v[88:91], v2, s[{c.sF}:{c.sF+3}], s{c.sTmp2} offen sc1')
    k.label('KW_FIN')
    c.make_tag()
    k(f's_sub_u32 s{c.sTmp}, s2, 157'); k(f's_lshl_b32 s{c.sTmp}, s{c.sTmp}, 6'); k(f's_add_u32 s{c.sTmp}, s{c.sTmp}, {WF}')
    k('s_waitcnt vmcnt(0)'); k('s_barrier')
    publish(c, c.sTmp, 0, 'KA_WP')
    st(3)
```

```python
from asmlib import *
from common import f2u, hx, srd, desc, allreduce16, allreduce8, xrow_reduce, Stamper, NAME, STMP
N = 10000
FS = 64
NONCE = 0
PF   = 4096
TF   = PF + 64 * FS
BF   = TF + 160 * FS
WF   = BF + 160 * FS
XC   = WF + 16 * FS
HOPF = XC + 256 * FS
HF   = HOPF + 256 * FS
FEND = HF + 256 * FS
WFR  = 128 << 10
WFR_BYTES = 73728
ELL  = 256 << 10
CELL = 2 << 20
CCAP = 48
CROW = CCAP * 4
CIMG = 157 * CROW
CSTR = 30208
FREG = CELL + 64 * CSTR
GOFF = 4 << 20
QS = 81920
GSZ = 32 * QS
NGBUF = 10
HOFF = GOFF + NGBUF * GSZ
HSZ = 2560000
CAP = 40
EPS = 1e-5
LOG2E = 1.4426950408889634
TOKB = 80000
TSTR = 2064
GSTR = 7 * TSTR
T7B = 240
LDS_BYTES = TOKB + 5 * GSTR
SCB = 2304
SPIN = 1 << 20
```

```python
from km_common import *

def merge(k, E, M):
    M = list(M)
    for e in E:
        if isinstance(e, tuple):
            for _ in range(e[1]):
                if M: k(M.pop(0))
        else: k(e)
    for m in M: k(m)

def transformer(c):
    k, st = c.k, c.st
    sWave, sF, sTmp = c.sWave, c.sF, c.sTmp
    sO = c.sT
    sPair, sSC, sT, sBuf, sOutOff, sC128, sEps, sL2e, sVal = 64, 65, 66, 67, 68, 69, 70, 71, 72
    vW = 128
    vQ, vG, vTok, vMask = 8, 9, 10, 11
    HB = 1536
    def rst(j):
        if st.on:
            k(f's_lshl_b32 s93, s{sT}, 1'); k(f's_add_u32 m0, s93, {53+j}' if False else f's_add_u32 m0, s93, {50+j}'); k('s_nop 3')
    k(f's_lshl_b32 s{sT}, s{sWave}, 3'); k(f's_lshl_b32 s{sBuf}, s{sWave}, 13'); k(f's_add_u32 s{sBuf}, s{sBuf}, {WFR}')
    for i in range(8):
        k(f's_mul_i32 s{sTmp}, s{sT}, 43'); k(f's_lshr_b32 s{sTmp}, s{sTmp}, 9'); k(f's_min_u32 s{sTmp}, s{sTmp}, 4')
        k(f's_mul_i32 s{sTmp}, s{sTmp}, {GSTR - 12*1024}'); k(f's_lshl_b32 s{sSC}, s{sT}, 10')
        k(f's_add_u32 s{sTmp}, s{sTmp}, s{sSC}'); k(f's_add_u32 m0, s{sTmp}, {SCB}')
        k(f's_add_u32 s{sT}, s{sT}, 1')
        k(f'buffer_load_dwordx4 v2, s[{sF}:{sF+3}], s{sBuf} offen sc1 lds')
        if i < 7: k(f's_add_u32 s{sBuf}, s{sBuf}, 1024')
    srd(k, sO, 82, 0, 2560000)
    k(f's_and_b32 s{sPair}, s{sWave}, 3')
    k(f's_mul_i32 s{sSC}, s{sPair}, {GSTR}'); k(f's_add_u32 s{sSC}, s{sSC}, {SCB}')
    k(f's_mov_b32 s{sC128}, {hx(f2u(1.0/128))}'); k(f's_mov_b32 s{sEps}, {hx(f2u(EPS))}'); k(f's_mov_b32 s{sL2e}, {hx(f2u(LOG2E))}')
    k(f's_mul_i32 s{sOutOff}, s2, {40*256}')
    k(f'v_and_b32 v{vQ}, 15, v1'); k(f'v_lshrrev_b32 v{vG}, 4, v1')
    def tokbase(dst, kreg):
        k(f'v_mul_u32_u24 v{dst}, {TSTR}, v{kreg}'); k(f'v_add_u32 v{dst}, {TOKB}, v{dst}')
        k(f'v_mov_b32 v7, {T7B}'); k(f'v_cmp_eq_u32 vcc, 7, v{kreg}'); k(f'v_cndmask_b32 v{dst}, v{dst}, v7, vcc')
        k(f's_lshl_b32 s{sTmp}, s{sPair}, 4'); k(f'v_add_u32 v{dst}, s{sTmp}, v{dst}')
    k(f'v_and_b32 v3, 7, v{vQ}'); tokbase(vTok, 3)
    k(f'v_lshl_add_u32 v{vTok}, v{vG}, 7, v{vTok}')
    k(f'v_lshrrev_b32 v4, 3, v{vQ}'); k(f'v_lshl_add_u32 v{vTok}, v4, 3, v{vTok}')
    k(f'v_lshrrev_b32 v5, 1, v{vG}')
    k(f'v_cmp_eq_u32 s[{sVal}:{sVal+1}], v4, v5')
    k(f'v_cndmask_b32 v{vMask}, 0, 1.0, s[{sVal}:{sVal+1}]')
    k(f's_mov_b32 s{sT}, 0'); k(f's_mov_b32 s{sBuf}, 0')
    vTK = 16
    def tk(cc, b=vTK): return V(b + 4 * cc, 4)
    def read_tok(b=vTK):
        return [f'ds_read_b64 v[{b+4*cc+2*h}:{b+4*cc+2*h+1}], v{vTok} offset:{(8*cc+h)*64}' for cc in range(4) for h in range(2)]
    k(f's_cmp_ge_u32 s{sWave}, 4'); k('s_cbranch_scc1 KZ')

    def waddr(n): return (n // 12) * GSTR + SCB + (n % 12) * 1024 if n < 48 else 4 * GSTR + SCB + (n - 48) * 1024
    def load_w(base):
        k(f'v_add_u32 v3, 32768, v2')
        for i in range(32):
            a_ = waddr(base + i)
            k(f'ds_read_b128 {V(vW+4*i,4)}, v{2 if a_ < 65536 else 3} offset:{a_ if a_ < 65536 else a_ - 32768}')
    vK, vU, vAcc = 32, 48, 64
    vGm, vX, vD1, vS, vRk, vC, vP, vDx, vAx, vPb, vRq, vD, vM, vM2 = 76, 80, 84, 88, 92, 96, 100, 104, 108, 110, 112, 113, 114, 115
    vGw, vGr, vRw, vRr, vHw2, vH1, vH2 = 12, 13, 14, 15, 116, 117, 118
    k(f'v_add_u32 v{vGw}, s{sSC}, v2')
    k(f'v_lshrrev_b32 v3, 2, v{vQ}'); k(f'v_lshl_add_u32 v3, v3, 4, v{vQ}'); k('v_lshlrev_b32 v3, 4, v3')
    k(f'v_and_b32 v4, 3, v{vQ}'); k('v_lshl_add_u32 v3, v4, 2, v3'); k(f'v_add_u32 v{vGr}, s{sSC}, v3')
    k(f'v_lshlrev_b32 v3, 2, v{vQ}'); k(f'v_add_u32 v{vRw}, s{sSC}, v3')
    k(f'v_lshlrev_b32 v3, 4, v{vG}'); k(f'v_add_u32 v{vRr}, s{sSC}, v3')
    k(f'v_lshlrev_b32 v3, 3, v1'); k(f'v_add_u32 v{vHw2}, s{sSC}, v3')
    k(f's_mov_b32 s{sTmp}, {WFR + 65536}')
    for i in range(4): k(f'buffer_load_dwordx4 {V(vK+4*i,4)}, v2, s[{sF}:{sF+3}], s{sTmp} offen offset:{1024*i} sc1')
    k('s_waitcnt vmcnt(4)'); st(52); k('s_barrier')
    load_w(0)
    k('s_waitcnt vmcnt(0) lgkmcnt(0)'); st(53); k('s_barrier'); st(54)
    def mm(d, a, b, first): return f'v_mfma_f32_16x16x32_bf16 {V(d,4)}, {a}, {b}, {"0" if first else V(d,4)}'
    def utile(T): return [mm(vAcc + 4 * (T % 3), V(vW + 16 * T + 4 * cc, 4), tk(cc), cc == 0) for cc in range(4)]
    def ucvt(T):
        a = vAcc + 4 * (T % 3); d = vU + 4 * (T // 2) + 2 * (T % 2)
        return [f'v_cvt_pk_bf16_f32 v{d}, v{a}, v{a+1}', f'v_cvt_pk_bf16_f32 v{d+1}, v{a+2}, v{a+3}']
    def head():
        return ([mm(vGm, tk(cc), tk(cc), cc == 0) for cc in range(4)] + [mm(vX, tk(cc), V(vK + 4 * cc, 4), cc == 0) for cc in range(4)]
                + utile(0) + utile(1) + utile(2) + ucvt(0) + utile(3) + ucvt(1))
    def tail():
        L = [f'ds_write_b128 v{vGw}, {V(vGm,4)}', f'ds_read_b32 v{vD}, v{vGr}']
        L += [mm(vD1, V(vK + 4 * cc, 4), tk(cc), cc == 0) for cc in range(4)]
        L += ucvt(2) + utile(4) + ucvt(3)
        L += [f'v_cvt_pk_bf16_f32 v{vAx}, v{vX}, v{vX+1}', f'v_cvt_pk_bf16_f32 v{vAx+1}, v{vX+2}, v{vX+3}']
        u5 = utile(5)
        L += ['s_waitcnt lgkmcnt(0)', f'v_mul_f32 v{vD}, s{sC128}, v{vD}', u5[0], f'v_fma_f32 v{vD}, -v{vD1}, v{vD1}, v{vD}', u5[1],
              f'v_max_f32 v{vD}, 0, v{vD}', u5[2], f'v_add_f32 v{vD}, s{sEps}, v{vD}', u5[3], f'v_rsq_f32 v{vRq}, v{vD}']
        L += [f'v_add_u32 v{vH1}, s{sBuf}, v{vGw}', f'ds_write_b32 v{vRw}, v{vRq} offset:1024', f'ds_read_b128 {V(vRk,4)}, v{vRr} offset:1024']
        L += ucvt(4) + utile(6) + [f'v_add_u32 v{vH2}, s{sBuf}, v{vHw2}'] + ucvt(5) + utile(7)
        L += ['s_waitcnt lgkmcnt(0)'] + [f'v_mul_f32 v{vC+r}, v{vRq}, v{vRk+r}' for r in range(4)]
        L += ucvt(6) + ucvt(7)
        L += [mm(vS, tk(cc), V(vU + 4 * cc, 4), cc == 0) for cc in range(4)]
        return L
    def chain(more):
        E = []
        if more: E += read_tok() + [f'v_add_u32 v{vTok}, {GSTR}, v{vTok}', 's_waitcnt lgkmcnt(0)', ('fill', 2)]
        E += [f'v_mul_f32 v{vS+r}, v{vS+r}, v{vC+r}' for r in range(4)]
        E += [f'v_max3_f32 v{vM}, v{vS}, v{vS+1}, v{vS+2}', f'v_max_f32 v{vM}, v{vM}, v{vS+3}', f'v_mov_b32 v{vM2}, v{vM}', ('fill', 2),
              f'v_permlane16_swap_b32 v{vM}, v{vM2}', f'v_max_f32 v{vM}, v{vM}, v{vM2}', ('fill', 1)]
        E += [f'v_sub_f32 v{vS+r}, v{vS+r}, v{vM}' for r in range(4)] + [('fill', 2)]
        for r in range(4): E += [f'v_exp_f32 v{vS+r}, v{vS+r}', ('fill', 1)]
        E += [f'v_add_f32 v{vM}, v{vS}, v{vS+1}', f'v_add_f32 v{vM2}, v{vS+2}, v{vS+3}', ('fill', 1), f'v_add_f32 v{vM}, v{vM}, v{vM2}',
              f'v_mov_b32 v{vM2}, v{vM}', f'v_mul_f32 v{vS}, v{vS}, v{vRk}', f'v_mul_f32 v{vS+1}, v{vS+1}, v{vRk+1}', ('fill', 1),
              f'v_permlane16_swap_b32 v{vM}, v{vM2}', f'v_mul_f32 v{vS+2}, v{vS+2}, v{vRk+2}', f'v_mul_f32 v{vS+3}, v{vS+3}, v{vRk+3}', ('fill', 1),
              f'v_add_f32 v{vM}, v{vM}, v{vM2}', f'v_rcp_f32 v{vM}, v{vM}', ('fill', 1), f'v_mul_f32 v{vM}, v{vM}, v{vMask}']
        E += [f'v_mul_f32 v{vP+r}, v{vS+r}, v{vM}' for r in range(4)] + [('fill', 1)]
        E += [f'v_cvt_pk_bf16_f32 v{vPb}, v{vP}, v{vP+1}', f'v_cvt_pk_bf16_f32 v{vPb+1}, v{vP+2}, v{vP+3}',
              f'ds_write_b128 v{vH1}, {V(vP,4)} offset:2048', ('fill', 1),
              f'v_mfma_f32_16x16x16_bf16 {V(vDx,4)}, {V(vAx,2)}, {V(vPb,2)}, 0', ('fill', 8),
              f'v_add_f32 v{vD1}, v{vD1}, v{vDx+2}', f'v_add_f32 v{vD1+1}, v{vD1+1}, v{vDx+3}', f'v_mul_f32 v{vD1+1}, s{sL2e}, v{vD1+1}',
              f'ds_write_b64 v{vH2}, {V(vD1,2)} offset:{2048+1024}', f's_xor_b32 s{sBuf}, s{sBuf}, {HB}',
              's_waitcnt lgkmcnt(0)', 's_barrier']
        return E
    for x in read_tok(): k(x)
    k(f'v_add_u32 v{vTok}, {GSTR}, v{vTok}'); k('s_waitcnt lgkmcnt(0)')
    for x in head(): k(x)
    k.label('KU_L')
    for x in tail(): k(x)
    k(f's_add_u32 s{sT}, s{sT}, 1'); k(f's_cmp_eq_u32 s{sT}, 5'); k('s_cbranch_scc1 KU_E')
    merge(k, chain(True), head())
    k('s_branch KU_L')
    k.label('KU_E')
    merge(k, chain(False), [])
    k('s_branch K_FIN')

    k.label('KZ')
    vTr, vBw, vAw, vBr, vOut, vHr, vHr2, vX32 = 12, 13, 14, 15, 32, 33, 34, 35
    vA = 36
    vB = 84
    vAcc = 92
    vDd = 104
    vPf, vMt, vZ0, vZ1 = 120, 124, 3, 4
    vSq, vDo = 120 - 0, 6
    vSq = 5
    sq = [5, 6, 7, 90]
    vDo = 0
    ZR, DUMP = 5120, 6144
    if int(c.opts.get('zprio', 1)): k('s_setprio 1')
    k(f'v_and_b32 v3, 1, v{vG}'); k('v_lshlrev_b32 v3, 2, v3'); k(f'v_lshrrev_b32 v4, 2, v{vQ}'); k('v_add_u32 v3, v3, v4')
    tokbase(vTr, 3)
    k(f'v_and_b32 v4, 3, v{vQ}'); k(f'v_lshl_add_u32 v{vTr}, v4, 6, v{vTr}'); k(f'v_lshl_add_u32 v{vTr}, v5, 3, v{vTr}')
    k(f'v_lshlrev_b32 v3, 2, v{vG}'); k(f'v_sub_u32 v3, v{vQ}, v3')
    k('v_mov_b32 v4, 0x3f80'); k('v_mov_b32 v6, 0x3f800000')
    for i in range(2):
        k(f'v_cmp_eq_u32 vcc, {2*i}, v3'); k(f'v_cndmask_b32 v{vB+2+i}, 0, v4, vcc')
        k(f'v_cmp_eq_u32 vcc, {2*i+1}, v3'); k(f'v_cndmask_b32 v{vB+2+i}, v{vB+2+i}, v6, vcc')
    k(f'v_lshlrev_b32 v3, 4, v{vG}')
    k(f'v_add_u32 v4, {ZR+448}, v3'); k(f'v_mov_b32 v6, {DUMP}')
    k(f'v_cndmask_b32 v{vBw}, v6, v4, s[{sVal}:{sVal+1}]'); k(f'v_add_u32 v{vBw}, s{sSC}, v{vBw}')
    k(f'v_and_b32 v4, 7, v{vQ}'); k('v_sub_u32 v4, 7, v4'); k('v_lshlrev_b32 v4, 6, v4')
    k('v_mov_b32 v6, 512'); k(f'v_cndmask_b32 v4, v6, v4, s[{sVal}:{sVal+1}]')
    k(f'v_add3_u32 v{vBr}, v4, v3, s{sSC}'); k(f'v_add_u32 v{vBr}, {ZR}, v{vBr}')
    k(f'v_lshrrev_b32 v3, 2, v{vQ}'); k('v_lshlrev_b32 v3, 4, v3')
    k(f'v_and_b32 v4, 3, v{vQ}'); k('v_lshl_add_u32 v3, v4, 1, v3')
    k(f'v_add_u32 v3, {ZR+448}, v3'); k(f'v_add_u32 v{vAw}, s{sSC}, v3')
    k(f'v_lshrrev_b32 v3, 3, v{vQ}'); k(f'v_lshlrev_b32 v{vOut}, 8, v3')
    k(f'v_and_b32 v4, 7, v{vQ}'); k(f'v_lshl_add_u32 v{vOut}, v4, 5, v{vOut}'); k(f'v_lshl_add_u32 v{vOut}, v{vG}, 3, v{vOut}')
    k(f's_lshl_b32 s{sTmp}, s{sPair}, 9'); k(f'v_add_u32 v{vOut}, s{sTmp}, v{vOut}')
    k(f'v_add_u32 v{vHr}, s{sSC}, v2')
    k(f'v_lshlrev_b32 v3, 3, v1'); k(f'v_add_u32 v{vHr2}, s{sSC}, v3')
    for i in range(4): k(f'v_mov_b32 v{vAcc+i}, 0')
    c.tail_tokens()
    k('s_barrier')
    load_w(32)
    k('s_waitcnt vmcnt(0) lgkmcnt(0)'); st(53); k('s_barrier'); st(54)
    k(f'ds_write_b128 v{vHr}, {V(vAcc,4)} offset:{ZR}')
    def zwork(par):
        L = []
        def tile(T):
            a = vAcc + 4 * (T % 3)
            for cc in range(4):
                L.append(f'v_mfma_f32_16x16x32_bf16 {V(a,4)}, {tk(cc)}, {V(vW+16*T+4*cc,4)}, {"0" if cc == 0 else V(a,4)}')
        def cvt(T):
            a = vAcc + 4 * (T % 3); d = vA + 6 * T + 4 * par
            L.append(f'v_cvt_pk_bf16_f32 v{d}, v{a}, v{a+1}'); L.append(f'v_cvt_pk_bf16_f32 v{d+1}, v{a+2}, v{a+3}')
        tile(0); tile(1)
        for T in range(2, 8): tile(T); cvt(T - 2)
        cvt(6); cvt(7)
        return L
    def tr_reads(): return [f'ds_read_b64_tr_b16 v[{vA+6*T+2}:{vA+6*T+3}], v{vTr} offset:{256*T}' for T in range(8)]
    for x in read_tok(): k(x)
    for x in tr_reads(): k(x)
    k(f'v_add_u32 v{vTok}, {GSTR}, v{vTok}'); k(f'v_add_u32 v{vTr}, {GSTR}, v{vTr}')
    k('s_waitcnt lgkmcnt(8)')
    for x in zwork(0): k(x)
    for x in read_tok(): k(x)
    k(f'v_add_u32 v{vTok}, {GSTR}, v{vTok}')
    def body(par, withz, more):
        Aop = lambda T: V(vA + 6 * T + 2 * par, 4)
        Bop = V(vB + 2 * par, 4); Pd = vB + 4 * par
        ob, oa = (0, 8) if par == 0 else (8, 0)
        hb = HB * par
        E = ['s_waitcnt lgkmcnt(0)', 's_barrier',
             f'ds_read_b128 {V(vPf,4)}, v{vHr} offset:{2048+hb}', f'ds_read_b64 {V(vMt,2)}, v{vHr2} offset:{2048+1024+hb}',
             ('fill', 6), 's_waitcnt lgkmcnt(1)',
             f'v_cvt_pk_bf16_f32 v{Pd}, v{vPf}, v{vPf+1}', f'v_cvt_pk_bf16_f32 v{Pd+1}, v{vPf+2}, v{vPf+3}', ('fill', 2)]
        def pv(T): return f'v_mfma_f32_16x16x32_bf16 {V(vDd+4*(T%4),4)}, {Aop(T)}, {Bop}, 0'
        def sqs(T):
            o = []
            for r in range(4):
                d = vDd + 4 * (T % 4) + r
                o.append(f'v_mul_f32 v{sq[r]}, v{d}, v{d}' if T == 0 else f'v_fmac_f32 v{sq[r]}, v{d}, v{d}')
            return o
        E += [pv(0), pv(1), pv(2), pv(3), ('fill', 5)]
        for T in range(4):
            E += sqs(T) + [pv(T + 4)] + [('fill', 1)]
        for T in range(4, 8):
            E += sqs(T) + [('fill', 2)]
        E += [f'v_add_f32 v{sq[0]}, v{sq[0]}, v{sq[1]}', f'v_add_f32 v{sq[2]}, v{sq[2]}, v{sq[3]}', f'v_add_f32 v{sq[0]}, v{sq[0]}, v{sq[2]}',
              f'v_mov_b32 v{sq[1]}, v{sq[0]}', ('fill', 2), f'v_permlane16_swap_b32 v{sq[0]}, v{sq[1]}', f'v_add_f32 v{sq[0]}, v{sq[0]}, v{sq[1]}',
              f'v_mov_b32 v{sq[1]}, v{sq[0]}', ('fill', 2), f'v_permlane32_swap_b32 v{sq[0]}, v{sq[1]}', f'v_add_f32 v{sq[0]}, v{sq[0]}, v{sq[1]}',
              's_waitcnt lgkmcnt(0)',
              f'v_mul_f32 v{sq[0]}, s{sC128}, v{sq[0]}', f'v_fma_f32 v{sq[0]}, -v{vMt}, v{vMt}, v{sq[0]}',
              f'v_max_f32 v{sq[0]}, 0, v{sq[0]}', f'v_add_f32 v{sq[0]}, s{sEps}, v{sq[0]}', f'v_rsq_f32 v{sq[0]}, v{sq[0]}', ('fill', 1),
              f'v_mul_f32 v{vZ0}, v{vMt+1}, v{sq[0]}', ('fill', 2)]
        dp = ('quad_perm:[1,0,3,2]', 'quad_perm:[2,3,0,1]', 'row_half_mirror')
        for i, m in enumerate(dp):
            s_ = vZ0 if i == 0 else vZ1
            E += [f'v_max_f32_dpp v{vZ1}, v{s_}, v{s_} {m} row_mask:0xf bank_mask:0xf', ('fill', 2 if i < 2 else 0)]
        E += [f'v_sub_f32 v{vZ0}, v{vZ0}, v{vZ1}', f'v_exp_f32 v{vZ0}, v{vZ0}', ('fill', 2)]
        for i, m in enumerate(dp):
            s_ = vZ0 if i == 0 else vZ1
            E += [f'v_add_f32_dpp v{vZ1}, v{s_}, v{s_} {m} row_mask:0xf bank_mask:0xf', ('fill', 2 if i < 2 else 0)]
        E += [f'v_rcp_f32 v{vZ1}, v{vZ1}', ('fill', 1), f'v_mul_f32 v{vZ0}, v{vZ0}, v{vZ1}']
        E += [f'v_mul_f32 v{vPf+r}, v{vPf+r}, v{vZ0}' for r in range(4)]
        E += [f'v_cvt_pk_bf16_f32 v{vZ1}, v{vZ0}, v{vZ0}', f'ds_write_b16 v{vAw}, v{vZ1} offset:{oa}']
        for m in dp:
            E += [f'v_add_f32_dpp v{vPf+r}, v{vPf+r}, v{vPf+r} {m} row_mask:0xf bank_mask:0xf' for r in range(4)]
        E += [f'v_cvt_pk_bf16_f32 v{vMt}, v{vPf}, v{vPf+1}', f'v_cvt_pk_bf16_f32 v{vMt+1}, v{vPf+2}, v{vPf+3}',
              f'ds_write_b64 v{vBw}, {V(vMt,2)} offset:{ob}']
        E += [f'ds_read_b128 {V(vDd+4*T,4)}, v{vBr} offset:{64*T}' for T in range(4)]
        E += [('fill', 99)]
        merge(k, E, zwork(1 - par) if withz else [])
        ext = [vAcc, vAcc + 4, vAcc + 8, vDd]
        for T in range(4, 7): k(f'ds_read_b128 {V(ext[T-4],4)}, v{vBr} offset:{64*T}')
        for T in range(8):
            b = vDd + 4 * T if T < 4 else ext[T - 4]
            if T == 0: k('s_waitcnt lgkmcnt(6)')
            elif T < 7: k(f's_waitcnt lgkmcnt({7 - T})')
            else: k('s_waitcnt lgkmcnt(0)')
            k(f'v_mfma_f32_16x16x32_bf16 {V(vPf,4)}, {Aop(T)}, {V(b,4)}, {"0" if T == 0 else V(vPf,4)}')
            if T == 0: k(f'ds_read_b128 {V(vDd,4)}, v{vBr} offset:{64*7}')
        if withz:
            for x in tr_reads(): k(x)
            k(f'v_add_u32 v{vTr}, {GSTR}, v{vTr}')
            if more:
                for x in read_tok(): k(x)
                k(f'v_add_u32 v{vTok}, {GSTR}, v{vTok}')
        k(f'v_cvt_pk_bf16_f32 v{vMt}, v{vPf}, v{vPf+1}'); k(f'v_cvt_pk_bf16_f32 v{vMt+1}, v{vPf+2}, v{vPf+3}')
        k(f'buffer_store_dwordx2 {V(vMt,2)}, v{vOut}, s[{sO}:{sO+3}], s{sOutOff} offen')
        k(f's_add_u32 s{sOutOff}, s{sOutOff}, 2048')
    k.label('KZ_L')
    body(0, True, True)
    if st.on: k(f's_add_u32 m0, s{sT}, 55'); k('s_nop 3'); st('m0')
    body(1, True, True)
    if st.on: k(f's_add_u32 m0, s{sT}, 56'); k('s_nop 3'); st('m0')
    k(f's_add_u32 s{sT}, s{sT}, 2'); k(f's_cmp_lt_u32 s{sT}, 4'); k('s_cbranch_scc1 KZ_L')
    body(0, False, False)
    st(59)
```

```python
import sys
from km_common import *
import km_a
from km_t import transformer

class Ctx: pass

def gen(opts):
    k = Kern(); c = Ctx(); c.k = k; c.opts = opts
    S0 = int(opts.get('S', 28))
    force_global = int(opts.get('force_global', 0)); force_slow = int(opts.get('force_slow', 0))
    st = c.st = Stamper(k, int(opts.get('stamp', 0)), 127, 88, 0)
    c.sWS = sWS = 4
    c.sF = sF = 8; sGR = 12; c.sGW = sGW = 16; c.sH = sH = 20; c.sX = sX = 24; c.sT = sT = 28; c.sT2 = sT2 = 32
    (c.sWave, sQuad, sPart, sMode, sDead, sHop) = (36, 37, 38, 39, 40, 41); sWave = c.sWave
    sSt = 42
    sSlow, c.sTag0, c.sTag1, sXcc, c.sTmp, c.sTmp2, c.sTmp3, c.sCnt = 45, 46, 47, 48, 49, 50, 51, 52
    sTag0, sTag1, sTmp, sTmp2, sTmp3, sCnt = c.sTag0, c.sTag1, c.sTmp, c.sTmp2, c.sTmp3, c.sCnt
    sFillM, sSlotW, sSlotR, sQoff, sTk = 53, 54, 55, 57, 58
    sHo = 76
    sEx, sM2, sMk = 60, 62, 64
    sNon, sSI, sHFR, sTokG, sTokL, sTK, sHFW = 92, 93, 94, 95, 96, 97, 98
    c.sNon = sNon
    vD, vD2, vGA, vHA, vSel, vAcc, vHp, vGp, vAd, vBuf, vFl, vHF, vX0, vI = 8, 11, 14, 15, 16, 20, 32, 38, 40, 44, 60, 62, 63, 64
    vW = 128
    IMG = TOKB; LM = IMG + 16384; BM = LM + 256; OV = BM + 256; LST = OV + 256

    def early_setup():
        k(f's_load_dword s{sNon}, s[{sWS}:{sWS+1}], {NONCE}')
        k(f's_mul_i32 s{sCnt}, s{sPart}, 1280'); k(f'v_add_u32 v3, s{sCnt}, v0')
        k(f'v_lshlrev_b32 v{vGA}, 3, v3')
        k(f'v_lshrrev_b32 v{vHA}, 3, v3'); k(f'v_lshlrev_b32 v{vHA}, 11, v{vHA}')
        k('v_and_b32 v4, 7, v3'); k(f'v_lshl_add_u32 v{vHA}, v4, 3, v{vHA}')
        k(f's_lshl_b32 s{sCnt}, s{sQuad}, 6'); k(f'v_add_u32 v{vHA}, s{sCnt}, v{vHA}')
        k('v_and_b32 v3, 15, v1'); k('v_lshrrev_b32 v4, 4, v1'); k('v_lshlrev_b32 v5, 2, v4'); k('v_sub_u32 v5, v3, v5')
        k('v_mov_b32 v6, 0x3f80'); k('v_mov_b32 v7, 0x3f800000')
        for i in range(2):
            k(f'v_cmp_eq_u32 vcc, {2*i}, v5'); k(f'v_cndmask_b32 v{vSel+i}, 0, v6, vcc')
            k(f'v_cmp_eq_u32 vcc, {2*i+1}, v5'); k(f'v_cndmask_b32 v{vSel+i}, v{vSel+i}, v7, vcc')
            k(f'v_mov_b32 v{vSel+2+i}, v{vSel+i}')
        k(f'v_lshrrev_b32 v5, 1, v3'); k(f'v_lshlrev_b32 v{vX0}, 8, v5'); k(f'v_lshl_add_u32 v{vX0}, v4, 3, v{vX0}')
        k('v_and_b32 v5, 1, v1'); k(f'v_lshl_add_u32 v{vX0}, v5, 2, v{vX0}')
        k(f'v_lshlrev_b32 v{vHF}, 6, v1')
        k('v_lshlrev_b32 v3, 4, v0'); k(f'v_add_u32 v3, {IMG}, v3')
        for i in range(4): k(f'v_mov_b32 v{vBuf+i}, -1')
        k(f'ds_write_b128 v3, {V(vBuf,4)}'); k(f'ds_write_b128 v3, {V(vBuf,4)} offset:8192')
        k(f'v_lshlrev_b32 v3, 2, v0'); k(f'v_add_u32 v3, {LM}, v3')
        k(f'v_mov_b32 v4, {hx((0xffffffff << S0) & 0xffffffff)}'); k('v_cmp_gt_u32 vcc, 64, v0'); k('v_cndmask_b32 v4, 0, v4, vcc')
        k('ds_write_b32 v3, v4')
    def make_tag():
        k('s_waitcnt lgkmcnt(0)')
        k(f's_mul_i32 s{sTag0}, s{sNon}, 0x9e3779b1'); k(f's_add_u32 s{sTag0}, s{sTag0}, 0x85ebca6b')
        k(f's_mul_i32 s{sTag1}, s{sTag0}, 0x2c1b3c6d'); k(f's_xor_b32 s{sTag1}, s{sTag1}, 0x297a2d39')
        k(f's_mov_b32 s{sNon}, s{sTag0}')
        k(f's_and_b32 s{sTag0}, s{sTag0}, 0xffffff00')
    c.early_setup = early_setup; c.make_tag = make_tag
    def poll(tag, soff, kmin, mask, vdst=vFl):
        k(f's_cmp_lg_u32 s{sDead}, 0'); k(f's_cbranch_scc1 {tag}_X')
        k(f's_add_u32 s{sTK}, s{sTag0}, {kmin}')
        k(f's_mov_b32 s{sCnt}, 0')
        if mask == 'lo32': k('s_mov_b32 exec_hi, 0')
        else: k(f's_mov_b64 exec, {mask}')
        k.label(f'{tag}_L')
        k(f'buffer_load_dwordx2 {V(vdst,2)}, v{vHF}, s[{sF}:{sF+3}], {soff} offen sc1')
        k('s_waitcnt vmcnt(0)')
        k(f'v_subrev_u32 v{vdst}, s{sTK}, v{vdst}')
        k(f'v_cmp_gt_u32 vcc, 64, v{vdst}')
        k(f'v_cmp_eq_u32 s[{sM2}:{sM2+1}], s{sTag1}, v{vdst+1}')
        k(f's_and_b64 vcc, vcc, s[{sM2}:{sM2+1}]')
        k('s_cmp_eq_u64 vcc, exec'); k(f's_cbranch_scc1 {tag}_D')
        k(f's_add_u32 s{sCnt}, s{sCnt}, 1'); k(f's_cmp_lt_u32 s{sCnt}, {SPIN}'); k(f's_cbranch_scc1 {tag}_L')
        k(f's_mov_b32 s{sDead}, 1')
        k.label(f'{tag}_D')
        k('s_mov_b64 exec, -1')
        k.label(f'{tag}_X')
    def dual(fn, tag):
        k(f's_cmp_eq_u32 s{sMode}, 0'); k(f's_cbranch_scc1 {tag}_G')
        fn(''); k(f's_branch {tag}_J')
        k.label(f'{tag}_G'); fn(' sc1')
        k.label(f'{tag}_J')

    k('s_cmp_ge_u32 s2, 256'); k('s_cbranch_scc1 K_END')
    st.init(); st(0); st.clk(62)
    k('s_load_dwordx16 s[64:79], s[0:1], 0')
    k('s_load_dwordx8 s[80:87], s[0:1], 64')
    k('v_lshrrev_b32 v3, 6, v0'); k('v_and_b32 v1, 63, v0')
    k(f'v_readfirstlane_b32 s{sWave}, v3')
    k('v_lshlrev_b32 v2, 4, v1')
    k(f's_and_b32 s{sTmp2}, s2, 7'); k(f's_lshr_b32 s{sTmp}, s2, 3')
    k(f's_and_b32 s{sPart}, s{sTmp}, 7'); k(f's_lshr_b32 s{sTmp}, s{sTmp}, 3')
    k(f's_lshl_b32 s{sQuad}, s{sTmp2}, 2'); k(f's_add_u32 s{sQuad}, s{sQuad}, s{sTmp}')
    k(f's_getreg_b32 s{sXcc}, hwreg(HW_REG_XCC_ID, 0, 4)')
    k(f's_mov_b32 s{sDead}, 0')
    k(f's_mul_i32 s{sQoff}, s{sQuad}, {QS}'); k(f's_add_u32 s{sQoff}, s{sQoff}, {GOFF}')
    k(f's_mul_i32 s{sFillM}, s{sWave}, 10240')
    k(f's_lshl_b32 s{sSlotW}, s{sQuad}, 3'); k(f's_add_u32 s{sSlotR}, s{sSlotW}, s{sWave}'); k(f's_add_u32 s{sSlotW}, s{sSlotW}, s{sPart}')
    k(f's_lshl_b32 s{sSlotW}, s{sSlotW}, 6'); k(f's_lshl_b32 s{sSlotR}, s{sSlotR}, 6')
    k('s_waitcnt lgkmcnt(0)')
    k(f's_mov_b64 s[{sWS}:{sWS+1}], s[86:87]')
    srd(k, sF, 86, 0, FREG); srd(k, sX, 64, 0, 2560000); srd(k, sT, 70, 0, 20000)
    k('s_cmp_lt_u32 s2, 157'); k('s_cbranch_scc1 KA_T')
    k('s_cmp_ge_u32 s2, 192'); k('s_cbranch_scc1 KA_P')
    k('s_cmp_lt_u32 s2, 159'); k('s_cbranch_scc1 KA_W')
    if int(opts.get('cpf', 1)):
        k(f's_getpc_b64 s[{sT2}:{sT2+1}]')
        k.label('K_PC')
        k(f's_mov_b32 s{sT2+2}, K_END-K_PC'); k(f's_mov_b32 s{sT2+3}, 0x20000')
        k('v_lshlrev_b32 v3, 6, v0')
        k(f'buffer_load_dword v126, v3, s[{sT2}:{sT2+3}], 0 offen')
    if int(opts.get('tlb', 1)):
        srd(k, sGW, 86, 0, HOFF + 7 * HSZ)
        k('v_lshlrev_b32 v3, 17, v0')
        k(f'buffer_load_dword v125, v3, s[{sGW}:{sGW+3}], 0 offen')
        srd(k, sGR, 82, 0, 2560000)
        k(f'buffer_load_dword v124, v3, s[{sGR}:{sGR+3}], 0 offen')
    early_setup(); make_tag()
    k('s_branch KA_DONE')
    k.label('KA_W'); km_a.weights(c); k('s_branch KA_DONE')
    k.label('KA_P'); km_a.producer(c); k('s_branch KA_DONE')
    k.label('KA_T'); km_a.transposer(c)
    k.label('KA_DONE')
    k(f's_add_u32 s{sTmp}, s{sSlotW}, {XC}')
    km_a.publish(c, sTmp, f's{sXcc}', 'K_XP')
    srd(k, sGR, sWS, f's{sQoff}', 80000); srd(k, sGW, sWS, f's{sQoff}', 80000); srd(k, sH, sWS, HOFF, 7 * HSZ)
    k('s_cmp_ge_u32 s2, 157'); k('s_cbranch_scc1 KB_DONE')
    vC, vO, vM = 64, 72, 80
    for n in range(2):
        k(f'v_add_u32 v3, {512*n}, v0'); k('v_mul_u32_u24 v4, 43691, v3'); k('v_lshrrev_b32 v4, 19, v4')
        k('v_mul_u32_u24 v5, 12, v4'); k('v_sub_u32 v5, v3, v5')
        k(f'v_mul_u32_u24 v4, {CSTR}, v4'); k(f'v_lshl_add_u32 v{vAd+n}, v5, 4, v4')
    for i in range(4): k(f'v_mov_b32 v{vC+4+i}, -1')
    k(f's_mov_b32 s{sTmp}, {PF}')
    poll('KB_PP', f's{sTmp}', 0, '-1')
    st(4)
    k(f's_mul_i32 s{sTmp}, s2, {CROW}'); k(f's_add_u32 s{sTmp}, s{sTmp}, {CELL}')
    k(f'buffer_load_dwordx4 {V(vC,4)}, v{vAd}, s[{sF}:{sF+3}], s{sTmp} offen sc1')
    k(f's_cmp_ge_u32 s{sWave}, 4'); k('s_cbranch_scc1 KB_C1')
    k(f'buffer_load_dwordx4 {V(vC+4,4)}, v{vAd+1}, s[{sF}:{sF+3}], s{sTmp} offen sc1')
    k.label('KB_C1')
    k(f'v_cmp_ne_u32 vcc, 0, v{vFl}'); k('s_cmp_lg_u64 vcc, 0'); k(f's_cselect_b32 s{sSlow}, 63, 0')
    def fill(tag):
        k(f's_add_u32 s{sTmp}, s{sFillM}, 4096'); k(f's_add_u32 s{sTmp2}, s{sFillM}, 8192')
        for so in (sFillM, sTmp):
            k(f's_mov_b32 m0, s{so}')
            for i in range(4):
                k(f'buffer_load_dwordx4 v2, s[{sGR}:{sGR+3}], s{so} offen offset:{1024*i} sc1 lds')
        k(f's_mov_b32 m0, s{sTmp2}')
        k(f's_cmp_eq_u32 s{sWave}, 7'); k(f's_cbranch_scc1 {tag}_7')
        k(f'buffer_load_dwordx4 v2, s[{sGR}:{sGR+3}], s{sTmp2} offen sc1 lds')
        k(f'buffer_load_dwordx4 v2, s[{sGR}:{sGR+3}], s{sTmp2} offen offset:1024 sc1 lds')
        k(f's_branch {tag}_E')
        k.label(f'{tag}_7')
        k('s_mov_b64 exec, 0xff')
        k(f'buffer_load_dwordx4 v2, s[{sGR}:{sGR+3}], s{sTmp2} offen sc1 lds')
        k('s_mov_b64 exec, -1')
        k.label(f'{tag}_E')
    k('s_waitcnt vmcnt(0)')
    st(5)
    vBit, vSl, vBk = 80, 88, 96
    k(f's_lshl_b32 s{sTmp3}, s{sWave}, 11'); k(f's_add_u32 s{sTmp3}, s{sTmp3}, {LST}')
    k(f's_mov_b32 s{sTmp2}, s{sTmp3}')
    def p1(lo, hi):
        for e in range(lo, hi):
            k(f'v_cmp_ne_u32 s[{sMk+2*e}:{sMk+2*e+1}], -1, v{vC+e}')
            k(f'v_lshrrev_b32 v3, 16, v{vC+e}'); k(f'v_lshlrev_b32 v{vBit+e}, v3, v7')
            k(f'v_lshrrev_b32 v{vSl+e}, 21, v{vC+e}'); k(f'v_add_u32 v{vSl+e}, v6, v{vSl+e}')
            k(f's_mov_b64 exec, s[{sMk+2*e}:{sMk+2*e+1}]')
            k(f'ds_or_rtn_b32 v{vO+e}, v{vSl+e}, v{vBit+e}')
            k('s_mov_b64 exec, -1')
        for e in range(lo, hi):
            k(f'v_lshrrev_b32 v{vSl+e}, 15, v{vC+e}'); k(f'v_add_u32 v{vSl+e}, {IMG}, v{vSl+e}')
            k(f'v_and_b32 v3, 31, v{vC+e}'); k(f'v_lshrrev_b32 v4, 28, v{vC+e}'); k('v_lshl_or_b32 v3, v4, 5, v3')
            k(f'v_lshl_add_u32 v{vBk+e}, v3, 2, v6')
        k('s_waitcnt lgkmcnt(0)')
        for e in range(lo, hi):
            k(f'v_and_b32 v3, v{vO+e}, v{vBit+e}'); k('v_cmp_eq_u32 vcc, 0, v3')
            k(f's_and_b64 exec, vcc, s[{sMk+2*e}:{sMk+2*e+1}]')
            k(f'ds_write_b16 v{vSl+e}, v{vC+e}')
            k(f'ds_or_b32 v{vBk+e}, v{vBit+e} offset:256')
            k(f's_andn2_b64 exec, s[{sMk+2*e}:{sMk+2*e+1}], vcc')
            k('v_mbcnt_lo_u32_b32 v3, exec_lo, 0'); k('v_mbcnt_hi_u32_b32 v3, exec_hi, v3')
            k(f'v_lshl_add_u32 v3, v3, 2, s{sTmp3}')
            k(f'ds_write_b32 v3, v{vC+e}')
            k(f's_bcnt1_i32_b64 s{sTmp}, exec'); k(f's_lshl2_add_u32 s{sTmp3}, s{sTmp}, s{sTmp3}')
            k('s_mov_b64 exec, -1')
    k(f'v_mov_b32 v6, {LM}'); k('v_mov_b32 v7, 1')
    p1(0, 4)
    k(f's_cmp_ge_u32 s{sWave}, 4'); k('s_cbranch_scc1 KB_P1E')
    p1(4, 8)
    k.label('KB_P1E')
    k('s_waitcnt lgkmcnt(0)'); k('s_barrier')
    st(6)
    vE, vLa, vBa, vLm, vBm, vFr, vR, vB2, vRow = 64, 65, 66, 67, 68, 69, 70, 71, 72
    k.label('KB_P2')
    k(f's_cmp_ge_u32 s{sTmp2}, s{sTmp3}'); k('s_cbranch_scc1 KB_P2E')
    k(f'v_lshl_add_u32 v3, v1, 2, s{sTmp2}')
    k(f'v_cmp_gt_u32 vcc, s{sTmp3}, v3'); k('s_mov_b64 exec, vcc')
    k(f'ds_read_b32 v{vE}, v3')
    k(f's_add_u32 s{sTmp2}, s{sTmp2}, 256')
    k('s_waitcnt lgkmcnt(0)')
    k(f'v_lshrrev_b32 v{vLa}, 21, v{vE}'); k(f'v_add_u32 v{vLa}, v6, v{vLa}')
    k(f'ds_read_b32 v{vLm}, v{vLa}')
    k(f'v_and_b32 v3, 31, v{vE}'); k(f'v_lshrrev_b32 v4, 28, v{vE}'); k('v_lshl_or_b32 v3, v4, 5, v3')
    k(f'v_lshl_add_u32 v{vBa}, v3, 2, v6')
    k(f'ds_read_b32 v{vBm}, v{vBa} offset:256')
    k(f'v_lshrrev_b32 v{vRow}, 23, v{vE}'); k(f'v_lshlrev_b32 v{vRow}, 8, v{vRow}'); k(f'v_add_u32 v{vRow}, {IMG}, v{vRow}')
    k(f'v_lshrrev_b32 v{vR}, 5, v{vE}'); k(f'v_mul_u32_u24 v{vR}, 7, v{vR}'); k(f'v_add_u32 v{vR}, v{vR}, v1')
    k.label('KB_P2R')
    k('s_waitcnt lgkmcnt(0)')
    k(f'v_or_b32 v{vFr}, v{vLm}, v{vBm}')
    k(f'v_cmp_eq_u32 vcc, -1, v{vFr}'); k(f'v_cndmask_b32 v{vFr}, v{vFr}, v{vLm}, vcc')
    k(f'v_not_b32 v{vFr}, v{vFr}')
    k(f'v_cmp_eq_u32 vcc, 0, v{vFr}')
    k(f's_and_saveexec_b64 s[{sEx}:{sEx+1}], vcc'); k('s_cbranch_execz KB_P2N')
    k(f'ds_add_rtn_u32 v3, v{vLa}, v7 offset:512'); k('s_waitcnt lgkmcnt(0)')
    k(f'v_add_u32 v3, {S0}, v3'); k(f'v_cmp_gt_u32 s[{sM2}:{sM2+1}], {CAP}, v3')
    k(f'v_lshl_add_u32 v3, v3, 1, v{vRow}')
    k(f's_mov_b64 exec, s[{sM2}:{sM2+1}]')
    k(f'ds_write_b16 v3, v{vE}')
    k.label('KB_P2N')
    k(f's_andn2_b64 exec, s[{sEx}:{sEx+1}], vcc'); k('s_cbranch_execz KB_P2X')
    k(f'v_alignbit_b32 v3, v{vFr}, v{vFr}, v{vR}'); k('v_ffbl_b32 v3, v3'); k(f'v_add_u32 v3, v3, v{vR}'); k('v_and_b32 v3, 31, v3')
    k(f'v_lshlrev_b32 v{vB2}, v3, v7')
    k(f'ds_or_rtn_b32 v{vLm}, v{vLa}, v{vB2}')
    k(f'ds_read_b32 v{vBm}, v{vBa} offset:256')
    k(f'v_lshl_add_u32 v3, v3, 1, v{vRow}'); k(f'v_add_u32 v{vR}, 11, v{vR}')
    k('s_waitcnt lgkmcnt(1)')
    k(f'v_and_b32 v4, v{vLm}, v{vB2}'); k('v_cmp_eq_u32 vcc, 0, v4')
    k(f's_and_saveexec_b64 s[{sEx}:{sEx+1}], vcc')
    k(f'ds_write_b16 v3, v{vE}'); k(f'ds_or_b32 v{vBa}, v{vB2} offset:256')
    k(f's_andn2_b64 exec, s[{sEx}:{sEx+1}], vcc'); k('s_cbranch_execnz KB_P2R')
    k.label('KB_P2X')
    k('s_mov_b64 exec, -1')
    k('s_branch KB_P2')
    k.label('KB_P2E')
    k('s_waitcnt lgkmcnt(0)'); k('s_barrier')
    st(7)
    k(f's_cmp_ge_u32 s{sWave}, 5'); k('s_cbranch_scc1 KB_EX')
    k(f's_lshl_b32 s{sTmp}, s{sWave}, 4'); k(f's_add_u32 s{sTmp}, s{sTmp}, {IMG}')
    k(f'v_lshl_add_u32 v3, v1, 8, s{sTmp}'); k('ds_read_b128 v[64:67], v3')
    k('v_lshl_add_u32 v4, v1, 2, v6'); k('ds_read_b32 v5, v4 offset:512')
    k(f's_mul_i32 s{sTmp}, s2, 5120'); k(f's_lshl_b32 s{sTmp2}, s{sWave}, 10'); k(f's_add_u32 s{sTmp}, s{sTmp}, s{sTmp2}')
    k(f's_add_u32 s{sTmp}, s{sTmp}, {ELL}')
    k('s_waitcnt lgkmcnt(1)')
    k(f'buffer_store_dwordx4 v[64:67], v2, s[{sF}:{sF+3}], s{sTmp} offen sc1')
    k('s_waitcnt lgkmcnt(0)')
    allreduce16(k, 'v_max_u32', 5); xrow_reduce(k, 'v_max_u32', 5, 4)
    k(f'v_readfirstlane_b32 s{sTmp2}, v5')
    k(f's_add_u32 s{sTmp2}, s{sTmp2}, {S0}'); k(f's_cmp_gt_u32 s{sTmp2}, {CAP}'); k(f's_cmov_b32 s{sTmp2}, 63')
    k(f's_or_b32 s{sTmp2}, s{sTmp2}, s{sSlow}')
    k.label('KB_EX')
    k(f's_lshl_b32 s{sTmp}, s2, 6'); k(f's_add_u32 s{sTmp}, s{sTmp}, {BF}')
    k('s_waitcnt vmcnt(0)'); k('s_barrier')
    km_a.publish(c, sTmp, f's{sTmp2}', 'KB_BP')
    st(8)
    k.label('KB_DONE')
    k(f's_lshl_b32 s{sTmp}, s{sQuad}, 9'); k(f's_add_u32 s{sTmp}, s{sTmp}, {XC}')
    k(f'v_mov_b32 v{vFl}, s{sXcc}')
    poll('KI_XP', f's{sTmp}', 0, '0xff')
    k(f'v_cmp_ne_u32 vcc, s{sXcc}, v{vFl}'); k('s_cmp_eq_u64 vcc, 0'); k(f's_cselect_b32 s{sMode}, {1 - force_global}, 0')
    k(f's_mul_i32 s{sTmp}, s{sWave}, {20*FS}'); k(f's_add_u32 s{sTmp}, s{sTmp}, {TF}')
    k(f's_mov_b32 s{sEx}, 0xfffff'); k(f's_cmp_eq_u32 s{sWave}, 7'); k(f's_cmov_b32 s{sEx}, 0x1ffff'); k(f's_mov_b32 s{sEx+1}, 0')
    poll('KB_TP', f's{sTmp}', 0, f's[{sEx}:{sEx+1}]')
    k(f'v_lshrrev_b32 v3, 2, v{vGA}')
    for i in range(3): k(f'buffer_load_ushort v{vD+i}, v3, s[{sT}:{sT+3}], 0 offen offset:{1024*i}')
    fill('KB_F')
    k(f's_mul_i32 s{sTmp}, s{sPart}, {20*FS}'); k(f's_add_u32 s{sTmp}, s{sTmp}, {BF}')
    k(f's_mov_b32 s{sEx}, 0xfffff'); k(f's_cmp_eq_u32 s{sPart}, 7'); k(f's_cmov_b32 s{sEx}, 0x1ffff'); k(f's_mov_b32 s{sEx+1}, 0')
    k(f'v_mov_b32 v{vFl}, 0')
    poll('KI_BP', f's{sTmp}', 0, f's[{sEx}:{sEx+1}]')
    st(9)
    k(f'v_cmp_lt_u32 vcc, {CAP}, v{vFl}'); k('s_cmp_lg_u64 vcc, 0'); k(f's_cselect_b32 s{sSlow}, 1, {force_slow}')
    k(f's_add_u32 s{sTmp}, s{sWave}, 8'); k(f's_add_u32 s{sTmp2}, s{sWave}, 16')
    k(f'v_readlane_b32 s{sSt}, v{vFl}, s{sWave}'); k(f'v_readlane_b32 s{sSt+1}, v{vFl}, s{sTmp}'); k(f'v_readlane_b32 s{sSt+2}, v{vFl}, s{sTmp2}')
    k(f's_cmp_lg_u32 s{sSlow}, 0')
    for i in range(3): k(f's_cmov_b32 s{sSt+i}, 0')
    k(f's_mul_i32 s{sTmp}, s{sPart}, 20'); k(f's_add_u32 s{sTmp}, s{sTmp}, s{sWave}'); k(f's_mul_i32 s{sTmp}, s{sTmp}, 5120')
    k(f's_add_u32 s{sTmp}, s{sTmp}, {ELL}')
    for i in range(3):
        k(f's_cmp_eq_u32 s{sSt+i}, 0'); k(f's_cbranch_scc1 KI_L{i}')
        for b in range(4):
            k(f'buffer_load_dwordx4 {V(vI+20*i+4*b,4)}, v2, s[{sF}:{sF+3}], s{sTmp} offen offset:{1024*b} sc1')
        k(f's_cmp_le_u32 s{sSt+i}, 32'); k(f's_cbranch_scc1 KI_L{i}')
        k(f's_add_u32 s{sTmp2}, s{sTmp}, 4096')
        k(f'buffer_load_dwordx4 {V(vI+20*i+16,4)}, v2, s[{sF}:{sF+3}], s{sTmp2} offen sc1')
        k.label(f'KI_L{i}')
        if i < 2: k(f's_add_u32 s{sTmp}, s{sTmp}, {8*5120}')
    sHM = 64
    for i in range(3):
        k(f'v_cmp_gt_u32 vcc, {80000 - 4096*i}, v{vGA}'); k(f's_mov_b64 s[{sHM+6+2*i}:{sHM+7+2*i}], vcc'); k(f's_mov_b64 s[{sHM+2*i}:{sHM+1+2*i}], 0')
    k(f's_cmp_ge_u32 s{sWave}, 4'); k(f's_cmov_b64 s[{sHM+10}:{sHM+11}], 0')
    k(f's_mov_b32 s{sHop}, 1'); k(f's_mov_b32 s{sTk}, 0')
    for i in range(3): k(f's_mov_b32 s{sHo+i}, {hx(i * 64 * 2048 - HSZ)}')
    k(f's_lshl_b32 s{sHFW}, s{sPart}, 5'); k(f's_add_u32 s{sHFW}, s{sHFW}, s{sQuad}'); k(f's_lshl_b32 s{sHFW}, s{sHFW}, 6')
    k(f's_add_u32 s{sHFW}, s{sHFW}, {HF}')
    k(f's_lshr_b32 s{sHFR}, s2, 5'); k(f's_lshl_b32 s{sHFR}, s{sHFR}, 11'); k(f's_add_u32 s{sHFR}, s{sHFR}, {HF}')
    k(f's_and_b32 s{sTmp}, s{sWave}, 3')
    k(f's_mul_i32 s{sTokG}, s2, 5'); k(f's_add_u32 s{sTokG}, s{sTokG}, s{sTmp}'); k(f's_lshl_b32 s{sTokG}, s{sTokG}, 11')
    k(f's_mul_i32 s{sTokL}, s{sTmp}, {GSTR}')
    k(f's_cmp_lt_u32 s{sWave}, 4'); k(f's_cmov_b32 s{sTk}, 8')
    k('s_cmp_ge_u32 s2, 250'); k(f's_cmov_b32 s{sTk}, 8')
    k(f'v_mov_b32 v{vFl}, 0'); k(f'v_mov_b32 v{vFl+1}, 0')
    for r in range(12): k(f'v_mov_b32 v{vAcc+r}, 0')
    def set_gw():
        k(f's_and_b32 s{sTmp}, s{sHop}, 1'); k(f's_add_u32 s{sTmp}, s{sTmp}, 1'); k(f's_add_u32 s{sTmp2}, s{sHop}, 2')
        k(f's_cmp_eq_u32 s{sMode}, 0'); k(f's_cmov_b32 s{sTmp}, s{sTmp2}')
        k(f's_mul_i32 s{sTmp}, s{sTmp}, {GSZ}'); k(f's_add_u32 s{sTmp}, s{sTmp}, s{sQoff}')
        k(f's_add_u32 s{sGW}, s{sWS}, s{sTmp}'); k(f's_addc_u32 s{sGW+1}, s{sWS+1}, 0')
    set_gw()
    k('s_waitcnt vmcnt(0)')
    for i in range(3):
        k(f'v_lshlrev_b32 v{vD+i}, 16, v{vD+i}'); k(f'v_mul_f32 v{vD2+i}, v{vD+i}, v{vD+i}')
    k('s_barrier')
    hmap = opts.get('hs', '012345')
    def hst(j):
        j = hmap.find(str(j))
        if st.on and j >= 0:
            k(f's_mul_i32 s{sSI}, s{sHop}, 6'); k(f's_add_u32 m0, s{sSI}, {4+j}'); k('s_nop 3'); st('m0')
    uid = [0]
    def tok_dma():
        uid[0] += 1; t = f'KTD{uid[0]}'
        k(f's_sub_u32 s{sTmp}, s{sTk}, 1'); k(f's_mul_i32 s{sTmp}, s{sTmp}, {HSZ}'); k(f's_add_u32 s{sTmp}, s{sTmp}, s{sTokG}')
        k(f's_mul_i32 s{sTmp2}, s{sTk}, {TSTR}'); k(f's_add_u32 s{sTmp2}, s{sTmp2}, {TOKB}')
        k(f's_cmp_eq_u32 s{sTk}, 7'); k(f's_cmov_b32 s{sTmp2}, {T7B}')
        k(f's_add_u32 m0, s{sTmp2}, s{sTokL}')
        k(f's_add_u32 s{sTk}, s{sTk}, 1')
        k(f'buffer_load_dwordx4 v2, s[{sH}:{sH+3}], s{sTmp} offen sc1 lds')
        k(f'buffer_load_dwordx4 v2, s[{sH}:{sH+3}], s{sTmp} offen offset:1024 sc1 lds')
        k(f's_cmp_lg_u32 s{sWave}, 4'); k(f's_cbranch_scc1 {t}')
        k(f's_add_u32 m0, s{sTmp2}, {4*GSTR}'); k(f's_add_u32 s{sTmp}, s{sTmp}, 8192')
        k(f'buffer_load_dwordx4 v2, s[{sH}:{sH+3}], s{sTmp} offen sc1 lds')
        k(f'buffer_load_dwordx4 v2, s[{sH}:{sH+3}], s{sTmp} offen offset:1024 sc1 lds')
        k.label(t)
    def tok0():
        uid[0] += 1; t = f'KT0{uid[0]}'
        k(f's_add_u32 s{sTmp2}, s{sTokL}, {TOKB}'); k(f's_mov_b32 s{sTmp}, s{sTokG}'); k(f's_mov_b32 s{sCnt}, 0')
        k.label(t)
        k(f's_mov_b32 m0, s{sTmp2}')
        k(f's_add_u32 s{sTmp2}, s{sTmp2}, 256')
        k(f'buffer_load_dword v{vX0}, s[{sX}:{sX+3}], s{sTmp} offen lds')
        k(f's_add_u32 s{sTmp}, s{sTmp}, 32'); k(f's_add_u32 s{sCnt}, s{sCnt}, 1')
        k(f's_and_b32 s{sTk}, s{sCnt}, 7'); k(f's_cbranch_scc1 {t}')
        k(f's_add_u32 s{sTmp2}, s{sTmp2}, {4*GSTR - 2048}'); k(f's_add_u32 s{sTmp}, s{sTmp}, {8192 - 256}')
        k(f's_cmp_lg_u32 s{sWave}, 4'); k(f's_cbranch_scc1 {t}E')
        k(f's_cmp_eq_u32 s{sCnt}, 8'); k(f's_cbranch_scc1 {t}')
        k.label(t + 'E')
        k(f's_mov_b32 s{sTk}, 1')
    def h_store(i, mask):
        k(f's_mov_b64 exec, s[{mask}:{mask+1}]')
        k(f'buffer_store_dwordx2 {V(vHp+2*i,2)}, v{vHA}, s[{sH}:{sH+3}], s{sHo+i} offen sc1')
        k('s_mov_b64 exec, -1')
    def scale(acc, d, dst, tmp):
        for r in range(4): k(f'v_mul_f32 v{tmp+r}, v{acc+r}, v{d}')
        k(f'v_cvt_pk_bf16_f32 v{dst}, v{tmp}, v{tmp+1}'); k(f'v_cvt_pk_bf16_f32 v{dst+1}, v{tmp+2}, v{tmp+3}')
    vTm = 124
    def epi(i, tag):
        acc = vAcc + 4 * i
        k(f's_cmp_eq_u32 s{sHop}, 7'); k(f's_cbranch_scc1 {tag}_7')
        scale(acc, vD2 + i, vGp, 4)
        if i: k(f's_movk_i32 s{sTmp}, {4096*i}')
        dual(lambda fl: k(f'buffer_store_dwordx2 {V(vGp,2)}, v{vGA}, s[{sGW}:{sGW+3}], {"s%d" % sTmp if i else "0"} offen{fl}'), tag + 'S')
        k(f's_branch {tag}_E')
        k.label(f'{tag}_7')
        scale(acc, vD + i, vHp + 2 * i, 4)
        k(f's_add_u32 s{sHo+i}, s{sHo+i}, {HSZ}')
        h_store(i, sHM + 6 + 2 * i)
        k.label(f'{tag}_E')
    def issue(i, gi, slot):
        b = vBuf + 8 * slot; vi = vI + 20 * i
        for j in range(4):
            s_ = 4 * gi + j
            k(f'v_lshlrev_b32_sdwa v{vAd+j}, 3, v{vi+s_//2} dst_sel:DWORD dst_unused:UNUSED_PAD src0_sel:DWORD src1_sel:WORD_{s_%2}')
        for j in range(4): k(f'ds_read_b64 {V(b+2*j,2)}, v{vAd+j}')
    def acc2(i, slot):
        b = vBuf + 8 * slot
        for h in range(2):
            k(f'v_mfma_f32_16x16x32_bf16 {V(vAcc+4*i,4)}, {V(vSel,4)}, {V(b+4*h,4)}, {V(vAcc+4*i,4)}')

    k.label('KH')
    hst(0)
    k(f's_cmp_lt_u32 s{sWave}, 4'); k('s_cbranch_scc1 KH_NOT')
    k(f's_cmp_lg_u32 s{sWave}, 7'); k('s_cbranch_scc1 KH_NHF')
    k(f's_cmp_lt_u32 s{sHop}, 3'); k('s_cbranch_scc1 KH_NHF')
    k(f's_add_u32 s{sCnt}, s{sTag0}, s{sHop}'); k(f's_sub_u32 s{sCnt}, s{sCnt}, 2')
    k(f'v_mov_b32 v4, s{sCnt}'); k(f'v_mov_b32 v5, s{sTag1}'); k('v_mov_b32 v3, 0')
    k('s_mov_b64 exec, 1')
    k(f'buffer_store_dwordx2 v[4:5], v3, s[{sF}:{sF+3}], s{sHFW} offen sc1')
    k('s_mov_b64 exec, -1')
    k.label('KH_NHF')
    k(f's_cmp_lg_u32 s{sWave}, 6'); k('s_cbranch_scc1 KH_NWP')
    k(f's_cmp_lg_u32 s{sHop}, 2'); k('s_cbranch_scc1 KH_NWP')
    k(f's_mov_b32 s{sTmp}, {WF}')
    poll('KH_WP', f's{sTmp}', 0, '3', vdst=vGp)
    k.label('KH_NWP')
    k(f's_cmp_lg_u32 s{sSlow}, 0'); k('s_cbranch_scc1 KH_NOT')
    k(f's_cmp_ge_u32 s{sTk}, 7'); k('s_cbranch_scc1 KH_NOT')
    k(f's_cmp_lg_u32 s{sTk}, 0'); k('s_cbranch_scc1 KH_T1')
    tok0()
    k('s_branch KH_T3')
    k.label('KH_T1')
    for rep in range(2):
        k(f's_add_u32 s{sTK}, s{sTag0}, s{sTk}')
        k(f'v_subrev_u32 v3, s{sTK}, v{vFl}'); k('v_cmp_gt_u32 vcc, 64, v3')
        k(f'v_cmp_eq_u32 s[{sM2}:{sM2+1}], s{sTag1}, v{vFl+1}'); k(f's_and_b64 vcc, vcc, s[{sM2}:{sM2+1}]')
        k('s_cmp_eq_u32 vcc_lo, -1'); k('s_cbranch_scc0 KH_T3')
        tok_dma()
        if rep == 0: k(f's_cmp_ge_u32 s{sTk}, 7'); k('s_cbranch_scc1 KH_NOT')
    k.label('KH_T3')
    k('s_mov_b32 exec_hi, 0')
    k(f'buffer_load_dwordx2 {V(vFl,2)}, v{vHF}, s[{sF}:{sF+3}], s{sHFR} offen sc1')
    k('s_mov_b64 exec, -1')
    k.label('KH_NOT')
    k(f's_cmp_lg_u32 s{sSlow}, 0'); k('s_cbranch_scc1 KH_SLOW')
    k(f's_max_u32 s{sTmp}, s{sSt}, s{sSt+1}'); k(f's_max_u32 s{sTmp}, s{sTmp}, s{sSt+2}')
    k(f's_cmp_gt_u32 s{sTmp}, {S0}'); k('s_cbranch_scc1 KH_XTRA')
    k.label('KH_MAIN')
    hst(6)
    G = S0 // 4
    items = [(i, g) for i in range(3) for g in range(G)]
    issue(0, 0, 0)
    for n, (i, g) in enumerate(items):
        if n == 2 * G - 1:
            k(f's_cmp_eq_u32 s{sSt+2}, 0'); k('s_cbranch_scc1 KH_TWO')
        if n + 1 < len(items):
            issue(*items[n + 1], (n + 1) % 2); k('s_waitcnt lgkmcnt(4)')
        else: k('s_waitcnt lgkmcnt(0)')
        acc2(i, n % 2)
        if i == 0 and g in (1, 3, 5): h_store(g // 2, sHM + 2 * (g // 2))
        if i > 0 and g == 0: epi(i - 1, f'KE{i-1}')
    epi(2, 'KE2')
    k('s_branch KH_GD')
    k.label('KH_TWO')
    k('s_waitcnt lgkmcnt(0)'); acc2(1, (2 * G - 1) % 2)
    epi(1, 'KE1B')
    k.label('KH_GD')
    hst(1)
    k(f's_mov_b32 s{sGR}, s{sGW}'); k(f's_mov_b32 s{sGR+1}, s{sGW+1}')
    k(f's_add_u32 s{sTmp2}, s{sSlotW}, {HOPF}')
    k(f's_add_u32 s{sCnt}, s{sTag0}, s{sHop}')
    k(f'v_mov_b32 v4, s{sCnt}'); k(f'v_mov_b32 v5, s{sTag1}'); k('v_mov_b32 v3, 0')
    k(f's_add_u32 s{sTmp3}, s{sSlotR}, {HOPF}')
    k('s_waitcnt vmcnt(0)'); hst(2); k('s_barrier'); hst(3)
    k(f's_cmp_eq_u32 s{sHop}, 7'); k('s_cbranch_scc1 KT')
    k(f's_cmp_lg_u32 s{sWave}, 0'); k('s_cbranch_scc1 KH_NF')
    k('s_mov_b64 exec, 1')
    dual(lambda fl: k(f'buffer_store_dwordx2 v[4:5], v3, s[{sF}:{sF+3}], s{sTmp2} offen{fl}'), 'KH_HFS')
    k('s_mov_b64 exec, -1')
    k.label('KH_NF')
    poll('KH_HP', f's{sTmp3}', f's{sHop}', '1', vdst=vGp)
    hst(4)
    fill('KH_F')
    for i in range(3):
        scale(vAcc + 4 * i, vD + i, vHp + 2 * i, 4)
        k(f's_add_u32 s{sHo+i}, s{sHo+i}, {HSZ}'); k(f's_mov_b64 s[{sHM+2*i}:{sHM+1+2*i}], s[{sHM+6+2*i}:{sHM+7+2*i}]')
    for r in range(12): k(f'v_mov_b32 v{vAcc+r}, 0')
    k(f's_add_u32 s{sHop}, s{sHop}, 1')
    set_gw()
    k('s_waitcnt vmcnt(0)')
    if st.on: k(f's_sub_u32 s{sHop}, s{sHop}, 1'); hst(5); k(f's_add_u32 s{sHop}, s{sHop}, 1')
    k('s_barrier')
    k('s_branch KH')
    k.label('KH_XTRA')
    for i in range(3):
        for g in range(G, CAP // 4):
            k(f's_cmp_le_u32 s{sSt+i}, {4*g}'); k(f's_cbranch_scc1 KX{i}')
            issue(i, g, 0); k('s_waitcnt lgkmcnt(0)'); acc2(i, 0)
        k.label(f'KX{i}')
    k('s_branch KH_MAIN')

    k.label('KH_SLOW')
    ACC = TOKB
    k('s_load_dwordx4 s[84:87], s[0:1], 8')
    for i in range(3): h_store(i, sHM + 2 * i)
    k(f'v_lshlrev_b32 v6, 4, v0'); k(f'v_add_u32 v6, {ACC}, v6')
    for r in range(4): k(f'v_mov_b32 v{vBuf+r}, 0')
    for n in range(3): k(f'ds_write_b128 v6, {V(vBuf,4)} offset:{8192*n}')
    k(f's_mul_i32 s{sTmp3}, s{sPart}, 1280')
    k('v_lshlrev_b32 v7, 2, v0')
    k(f's_mov_b32 s{sCnt}, 0')
    k('s_waitcnt lgkmcnt(0)')
    srd(k, sT, 84, 0, 640000); srd(k, sT2, 86, 0, 640000)
    k('s_barrier')
    k.label('KS_L')
    k(f'buffer_load_dword v{vBuf}, v7, s[{sT2}:{sT2+3}], s{sCnt} offen')
    k(f'buffer_load_dword v{vBuf+1}, v7, s[{sT}:{sT+3}], s{sCnt} offen')
    k(f'v_add_u32 v3, s{sCnt}, v7')
    k(f'v_cmp_gt_u32 s[{sEx}:{sEx+1}], s{sT+2}, v3')
    k('s_waitcnt vmcnt(0)')
    k(f'v_subrev_u32 v{vBuf}, s{sTmp3}, v{vBuf}')
    k(f'v_cmp_gt_u32 vcc, 1280, v{vBuf}')
    k(f's_and_b64 exec, vcc, s[{sEx}:{sEx+1}]')
    k(f'v_lshlrev_b32 v{vBuf+1}, 3, v{vBuf+1}')
    k(f'ds_read_b64 {V(vBuf+2,2)}, v{vBuf+1}')
    k(f'v_lshlrev_b32 v{vBuf}, 4, v{vBuf}'); k(f'v_add_u32 v{vBuf}, {ACC}, v{vBuf}')
    k('s_waitcnt lgkmcnt(0)')
    k(f'v_lshlrev_b32 v{vBuf+4}, 16, v{vBuf+2}'); k(f'v_and_b32 v{vBuf+5}, 0xffff0000, v{vBuf+2}')
    k(f'v_lshlrev_b32 v{vBuf+6}, 16, v{vBuf+3}'); k(f'v_and_b32 v{vBuf+7}, 0xffff0000, v{vBuf+3}')
    for r in range(4): k(f'ds_add_f32 v{vBuf}, v{vBuf+4+r} offset:{4*r}')
    k('s_mov_b64 exec, -1')
    k(f's_add_u32 s{sCnt}, s{sCnt}, 2048'); k(f's_cmp_lt_u32 s{sCnt}, 640000'); k('s_cbranch_scc1 KS_L')
    k('s_waitcnt lgkmcnt(0)'); k('s_barrier')
    for i in range(3): k(f'ds_read_b128 {V(vAcc+4*i,4)}, v6 offset:{8192*i}')
    k('s_waitcnt lgkmcnt(0)')
    for i in range(3):
        if i == 2: k(f's_cmp_ge_u32 s{sWave}, 4'); k('s_cbranch_scc1 KH_GD')
        epi(i, f'KSE{i}')
    k('s_branch KH_GD')

    k.label('KT')
    k(f's_cmp_lg_u32 s{sWave}, 7'); k('s_cbranch_scc1 KT_NF')
    k('s_mov_b64 exec, 1')
    k(f'buffer_store_dwordx2 v[4:5], v3, s[{sF}:{sF+3}], s{sHFW} offen sc1')
    k('s_mov_b64 exec, -1')
    k.label('KT_NF')
    k('s_cmp_ge_u32 s2, 250'); k('s_cbranch_scc1 K_FIN')
    def tail_tokens():
        k(f's_cmp_lg_u32 s{sTk}, 0'); k('s_cbranch_scc1 KT_T1')
        tok0()
        k.label('KT_T1')
        poll('KT_HP', f's{sHFR}', 7, 'lo32', vdst=120)
        st(52)
        k.label('KT_T2')
        tok_dma()
        k(f's_cmp_lt_u32 s{sTk}, 8'); k('s_cbranch_scc1 KT_T2')
    c.tail_tokens = tail_tokens
    transformer(c)
    k.label('K_FIN')
    k('s_cmp_lg_u32 s2, 0'); k('s_cbranch_scc1 K_FIN2')
    k(f's_cmp_lg_u32 s{sWave}, 4'); k('s_cbranch_scc1 K_FIN2')
    k(f'v_mov_b32 v4, s{sNon}'); k('v_mov_b32 v3, 0'); k('s_mov_b64 exec, 1')
    k(f'buffer_store_dword v4, v3, s[{sF}:{sF+3}], 0 offen')
    k.label('K_FIN2')
    if st.on:
        k('s_waitcnt vmcnt(0)'); st(61); st.clk(63); st.flush(sWS, sWave, 3)
    k.label('K_END')
    k('s_endpgm')
    return k

def build(opts):
    hdr = open('cdna_kernels/%s.s.ref' % NAME).read().split('\n')
    hdr = [l for l in hdr if l.startswith(';') and '@launch' not in l]
    k = gen(opts); k.finalize()
    nm = NAME + '_kernel'
    out = hdr + ['; @launch grid=(256,1,1) block=(512,1,1) lds=%d' % LDS_BYTES, '.amdgcn_target "amdgcn-amd-amdhsa--gfx950"', '.text',
                 '.globl %s' % nm, '.p2align 8', '.type %s,@function' % nm, nm + ':', k.text(),
                 '.section .rodata,"a"', '.p2align 6', desc(nm, 256, 100, 256)]
    return '\n'.join(out) + '\n'

if __name__ == '__main__':
    path = sys.argv[1]
    opts = dict(a.split('=') for a in sys.argv[2:] if '=' in a)
    open(path, 'w').write(build(opts)); print('wrote', path)
```

```python
import sys
from km_common import *
import km_a
from km_t import transformer

class Ctx: pass

def gen(opts):
    k = Kern(); c = Ctx(); c.k = k; c.opts = opts
    S0 = int(opts.get('S', 28))
    force_global = int(opts.get('force_global', 0)); force_slow = int(opts.get('force_slow', 0))
    st = c.st = Stamper(k, int(opts.get('stamp', 0)), 127, 88, 0)
    c.sWS = sWS = 4
    c.sF = sF = 8; sGR = 12; c.sGW = sGW = 16; c.sH = sH = 20; c.sX = sX = 24; c.sT = sT = 28; c.sT2 = sT2 = 32
    (c.sWave, sQuad, sPart, sMode, sDead, sHop) = (36, 37, 38, 39, 40, 41); sWave = c.sWave
    sSt = 42
    sSlow, c.sTag0, c.sTag1, sXcc, c.sTmp, c.sTmp2, c.sTmp3, c.sCnt = 45, 46, 47, 48, 49, 50, 51, 52
    sTag0, sTag1, sTmp, sTmp2, sTmp3, sCnt = c.sTag0, c.sTag1, c.sTmp, c.sTmp2, c.sTmp3, c.sCnt
    sFillM, sSlotW, sSlotR, sQoff, sTk = 53, 54, 55, 57, 58
    sHo = 76
    sEx, sM2, sMk = 60, 62, 64
    sNon, sSI, sHFR, sTokG, sTokL, sTK, sHFW = 92, 93, 94, 95, 96, 97, 98
    c.sNon = sNon
    vD, vD2, vGA, vHA, vSel, vAcc, vHp, vGp, vAd, vBuf, vFl, vHF, vX0, vI = 8, 11, 14, 15, 16, 20, 32, 38, 40, 44, 60, 62, 63, 64
    vW = 128
    IMG = TOKB; LM = IMG + 16384; BM = LM + 256; OV = BM + 256; LST = OV + 256

    def early_setup():
        k(f's_load_dword s{sNon}, s[{sWS}:{sWS+1}], {NONCE}')
        k(f's_mul_i32 s{sCnt}, s{sPart}, 1280'); k(f'v_add_u32 v3, s{sCnt}, v0')
        k(f'v_lshlrev_b32 v{vGA}, 3, v3')
        k(f'v_lshrrev_b32 v{vHA}, 3, v3'); k(f'v_lshlrev_b32 v{vHA}, 11, v{vHA}')
        k('v_and_b32 v4, 7, v3'); k(f'v_lshl_add_u32 v{vHA}, v4, 3, v{vHA}')
        k(f's_lshl_b32 s{sCnt}, s{sQuad}, 6'); k(f'v_add_u32 v{vHA}, s{sCnt}, v{vHA}')
        k('v_and_b32 v3, 15, v1'); k('v_lshrrev_b32 v4, 4, v1'); k('v_lshlrev_b32 v5, 2, v4'); k('v_sub_u32 v5, v3, v5')
        k('v_mov_b32 v6, 0x3f80'); k('v_mov_b32 v7, 0x3f800000')
        for i in range(2):
            k(f'v_cmp_eq_u32 vcc, {2*i}, v5'); k(f'v_cndmask_b32 v{vSel+i}, 0, v6, vcc')
            k(f'v_cmp_eq_u32 vcc, {2*i+1}, v5'); k(f'v_cndmask_b32 v{vSel+i}, v{vSel+i}, v7, vcc')
            k(f'v_mov_b32 v{vSel+2+i}, v{vSel+i}')
        k(f'v_lshrrev_b32 v5, 1, v3'); k(f'v_lshlrev_b32 v{vX0}, 8, v5'); k(f'v_lshl_add_u32 v{vX0}, v4, 3, v{vX0}')
        k('v_and_b32 v5, 1, v1'); k(f'v_lshl_add_u32 v{vX0}, v5, 2, v{vX0}')
        k(f'v_lshlrev_b32 v{vHF}, 6, v1')
        k('v_lshlrev_b32 v3, 4, v0'); k(f'v_add_u32 v3, {IMG}, v3')
        for i in range(4): k(f'v_mov_b32 v{vBuf+i}, -1')
        k(f'ds_write_b128 v3, {V(vBuf,4)}'); k(f'ds_write_b128 v3, {V(vBuf,4)} offset:8192')
        k(f'v_lshlrev_b32 v3, 2, v0'); k(f'v_add_u32 v3, {LM}, v3')
        k(f'v_mov_b32 v4, {hx((0xffffffff << S0) & 0xffffffff)}'); k('v_cmp_gt_u32 vcc, 64, v0'); k('v_cndmask_b32 v4, 0, v4, vcc')
        k('ds_write_b32 v3, v4')
    def make_tag():
        k('s_waitcnt lgkmcnt(0)')
        k(f's_mul_i32 s{sTag0}, s{sNon}, 0x9e3779b1'); k(f's_add_u32 s{sTag0}, s{sTag0}, 0x85ebca6b')
        k(f's_mul_i32 s{sTag1}, s{sTag0}, 0x2c1b3c6d'); k(f's_xor_b32 s{sTag1}, s{sTag1}, 0x297a2d39')
        k(f's_mov_b32 s{sNon}, s{sTag0}')
        k(f's_and_b32 s{sTag0}, s{sTag0}, 0xffffff00')
    c.early_setup = early_setup; c.make_tag = make_tag
    def poll(tag, soff, kmin, mask, vdst=vFl):
        k(f's_cmp_lg_u32 s{sDead}, 0'); k(f's_cbranch_scc1 {tag}_X')
        k(f's_add_u32 s{sTK}, s{sTag0}, {kmin}')
        k(f's_mov_b32 s{sCnt}, 0')
        if mask == 'lo32': k('s_mov_b32 exec_hi, 0')
        else: k(f's_mov_b64 exec, {mask}')
        k.label(f'{tag}_L')
        k(f'buffer_load_dwordx2 {V(vdst,2)}, v{vHF}, s[{sF}:{sF+3}], {soff} offen sc1')
        k('s_waitcnt vmcnt(0)')
        k(f'v_subrev_u32 v{vdst}, s{sTK}, v{vdst}')
        k(f'v_cmp_gt_u32 vcc, 64, v{vdst}')
        k(f'v_cmp_eq_u32 s[{sM2}:{sM2+1}], s{sTag1}, v{vdst+1}')
        k(f's_and_b64 vcc, vcc, s[{sM2}:{sM2+1}]')
        k('s_cmp_eq_u64 vcc, exec'); k(f's_cbranch_scc1 {tag}_D')
        k(f's_add_u32 s{sCnt}, s{sCnt}, 1'); k(f's_cmp_lt_u32 s{sCnt}, {SPIN}'); k(f's_cbranch_scc1 {tag}_L')
        k(f's_mov_b32 s{sDead}, 1')
        k.label(f'{tag}_D')
        k('s_mov_b64 exec, -1')
        k.label(f'{tag}_X')
    def dual(fn, tag):
        k(f's_cmp_eq_u32 s{sMode}, 0'); k(f's_cbranch_scc1 {tag}_G')
        fn(''); k(f's_branch {tag}_J')
        k.label(f'{tag}_G'); fn(' sc1')
        k.label(f'{tag}_J')

    k('s_cmp_ge_u32 s2, 256'); k('s_cbranch_scc1 K_END')
    st.init(); st(0); st.clk(62)
    k('s_load_dwordx16 s[64:79], s[0:1], 0')
    k('s_load_dwordx8 s[80:87], s[0:1], 64')
    k('v_lshrrev_b32 v3, 6, v0'); k('v_and_b32 v1, 63, v0')
    k(f'v_readfirstlane_b32 s{sWave}, v3')
    k('v_lshlrev_b32 v2, 4, v1')
    k(f's_and_b32 s{sTmp2}, s2, 7'); k(f's_lshr_b32 s{sTmp}, s2, 3')
    k(f's_and_b32 s{sPart}, s{sTmp}, 7'); k(f's_lshr_b32 s{sTmp}, s{sTmp}, 3')
    k(f's_lshl_b32 s{sQuad}, s{sTmp2}, 2'); k(f's_add_u32 s{sQuad}, s{sQuad}, s{sTmp}')
    k(f's_getreg_b32 s{sXcc}, hwreg(HW_REG_XCC_ID, 0, 4)')
    k(f's_mov_b32 s{sDead}, 0')
    k(f's_mul_i32 s{sQoff}, s{sQuad}, {QS}'); k(f's_add_u32 s{sQoff}, s{sQoff}, {GOFF}')
    k(f's_mul_i32 s{sFillM}, s{sWave}, 10240')
    k(f's_lshl_b32 s{sSlotW}, s{sQuad}, 3'); k(f's_add_u32 s{sSlotR}, s{sSlotW}, s{sWave}'); k(f's_add_u32 s{sSlotW}, s{sSlotW}, s{sPart}')
    k(f's_lshl_b32 s{sSlotW}, s{sSlotW}, 6'); k(f's_lshl_b32 s{sSlotR}, s{sSlotR}, 6')
    k('s_waitcnt lgkmcnt(0)')
    k(f's_mov_b64 s[{sWS}:{sWS+1}], s[86:87]')
    srd(k, sF, 86, 0, FREG); srd(k, sX, 64, 0, 2560000); srd(k, sT, 70, 0, 20000)
    k('s_cmp_lt_u32 s2, 157'); k('s_cbranch_scc1 KA_T')
    k('s_cmp_ge_u32 s2, 192'); k('s_cbranch_scc1 KA_P')
    k('s_cmp_lt_u32 s2, 159'); k('s_cbranch_scc1 KA_W')
    if int(opts.get('cpf', 1)):
        k(f's_getpc_b64 s[{sT2}:{sT2+1}]')
        k.label('K_PC')
        k(f's_mov_b32 s{sT2+2}, K_END-K_PC'); k(f's_mov_b32 s{sT2+3}, 0x20000')
        k('v_lshlrev_b32 v3, 6, v0')
        k(f'buffer_load_dword v126, v3, s[{sT2}:{sT2+3}], 0 offen')
    if int(opts.get('tlb', 1)):
        srd(k, sGW, 86, 0, HOFF + 7 * HSZ)
        k('v_lshlrev_b32 v3, 17, v0')
        k(f'buffer_load_dword v125, v3, s[{sGW}:{sGW+3}], 0 offen')
        srd(k, sGR, 82, 0, 2560000)
        k(f'buffer_load_dword v124, v3, s[{sGR}:{sGR+3}], 0 offen')
    early_setup(); make_tag()
    k('s_branch KA_DONE')
    k.label('KA_W'); km_a.weights(c); k('s_branch KA_DONE')
    k.label('KA_P'); km_a.producer(c); k('s_branch KA_DONE')
    k.label('KA_T'); km_a.transposer(c)
    k.label('KA_DONE')
    k(f's_add_u32 s{sTmp}, s{sSlotW}, {XC}')
    km_a.publish(c, sTmp, f's{sXcc}', 'K_XP')
    srd(k, sGR, sWS, f's{sQoff}', 80000); srd(k, sGW, sWS, f's{sQoff}', 80000); srd(k, sH, sWS, HOFF, 7 * HSZ)
    k('s_cmp_ge_u32 s2, 157'); k('s_cbranch_scc1 KB_DONE')
    vC, vO, vM = 64, 72, 80
    for n in range(2):
        k(f'v_add_u32 v3, {512*n}, v0'); k('v_mul_u32_u24 v4, 43691, v3'); k('v_lshrrev_b32 v4, 19, v4')
        k('v_mul_u32_u24 v5, 12, v4'); k('v_sub_u32 v5, v3, v5')
        k(f'v_mul_u32_u24 v4, {CSTR}, v4'); k(f'v_lshl_add_u32 v{vAd+n}, v5, 4, v4')
    for i in range(4): k(f'v_mov_b32 v{vC+4+i}, -1')
    k(f's_mov_b32 s{sTmp}, {PF}')
    poll('KB_PP', f's{sTmp}', 0, '-1')
    st(4)
    k(f's_mul_i32 s{sTmp}, s2, {CROW}'); k(f's_add_u32 s{sTmp}, s{sTmp}, {CELL}')
    k(f'buffer_load_dwordx4 {V(vC,4)}, v{vAd}, s[{sF}:{sF+3}], s{sTmp} offen sc1')
    k(f's_cmp_ge_u32 s{sWave}, 4'); k('s_cbranch_scc1 KB_C1')
    k(f'buffer_load_dwordx4 {V(vC+4,4)}, v{vAd+1}, s[{sF}:{sF+3}], s{sTmp} offen sc1')
    k.label('KB_C1')
    k(f'v_cmp_ne_u32 vcc, 0, v{vFl}'); k('s_cmp_lg_u64 vcc, 0'); k(f's_cselect_b32 s{sSlow}, 63, 0')
    def fill(tag):
        k(f's_add_u32 s{sTmp}, s{sFillM}, 4096'); k(f's_add_u32 s{sTmp2}, s{sFillM}, 8192')
        for so in (sFillM, sTmp):
            k(f's_mov_b32 m0, s{so}')
            for i in range(4):
                k(f'buffer_load_dwordx4 v2, s[{sGR}:{sGR+3}], s{so} offen offset:{1024*i} sc1 lds')
        k(f's_mov_b32 m0, s{sTmp2}')
        k(f's_cmp_eq_u32 s{sWave}, 7'); k(f's_cbranch_scc1 {tag}_7')
        k(f'buffer_load_dwordx4 v2, s[{sGR}:{sGR+3}], s{sTmp2} offen sc1 lds')
        k(f'buffer_load_dwordx4 v2, s[{sGR}:{sGR+3}], s{sTmp2} offen offset:1024 sc1 lds')
        k(f's_branch {tag}_E')
        k.label(f'{tag}_7')
        k('s_mov_b64 exec, 0xff')
        k(f'buffer_load_dwordx4 v2, s[{sGR}:{sGR+3}], s{sTmp2} offen sc1 lds')
        k('s_mov_b64 exec, -1')
        k.label(f'{tag}_E')
    k('s_waitcnt vmcnt(0)')
    st(5)
    vBit, vSl, vBk = 80, 88, 96
    k(f's_lshl_b32 s{sTmp3}, s{sWave}, 11'); k(f's_add_u32 s{sTmp3}, s{sTmp3}, {LST}')
    k(f's_mov_b32 s{sTmp2}, s{sTmp3}')
    def p1(lo, hi):
        for e in range(lo, hi):
            k(f'v_cmp_ne_u32 s[{sMk+2*e}:{sMk+2*e+1}], -1, v{vC+e}')
            k(f'v_lshrrev_b32 v3, 16, v{vC+e}'); k(f'v_lshlrev_b32 v{vBit+e}, v3, v7')
            k(f'v_lshrrev_b32 v{vSl+e}, 21, v{vC+e}'); k(f'v_add_u32 v{vSl+e}, v6, v{vSl+e}')
            k(f's_mov_b64 exec, s[{sMk+2*e}:{sMk+2*e+1}]')
            k(f'ds_or_rtn_b32 v{vO+e}, v{vSl+e}, v{vBit+e}')
            k('s_mov_b64 exec, -1')
        for e in range(lo, hi):
            k(f'v_lshrrev_b32 v{vSl+e}, 15, v{vC+e}'); k(f'v_add_u32 v{vSl+e}, {IMG}, v{vSl+e}')
            k(f'v_and_b32 v3, 31, v{vC+e}'); k(f'v_lshrrev_b32 v4, 28, v{vC+e}'); k('v_lshl_or_b32 v3, v4, 5, v3')
            k(f'v_lshl_add_u32 v{vBk+e}, v3, 2, v6')
        k('s_waitcnt lgkmcnt(0)')
        for e in range(lo, hi):
            k(f'v_and_b32 v3, v{vO+e}, v{vBit+e}'); k('v_cmp_eq_u32 vcc, 0, v3')
            k(f's_and_b64 exec, vcc, s[{sMk+2*e}:{sMk+2*e+1}]')
            k(f'ds_write_b16 v{vSl+e}, v{vC+e}')
            k(f'ds_or_b32 v{vBk+e}, v{vBit+e} offset:256')
            k(f's_andn2_b64 exec, s[{sMk+2*e}:{sMk+2*e+1}], vcc')
            k('v_mbcnt_lo_u32_b32 v3, exec_lo, 0'); k('v_mbcnt_hi_u32_b32 v3, exec_hi, v3')
            k(f'v_lshl_add_u32 v3, v3, 2, s{sTmp3}')
            k(f'ds_write_b32 v3, v{vC+e}')
            k(f's_bcnt1_i32_b64 s{sTmp}, exec'); k(f's_lshl2_add_u32 s{sTmp3}, s{sTmp}, s{sTmp3}')
            k('s_mov_b64 exec, -1')
    k(f'v_mov_b32 v6, {LM}'); k('v_mov_b32 v7, 1')
    p1(0, 4)
    k(f's_cmp_ge_u32 s{sWave}, 4'); k('s_cbranch_scc1 KB_P1E')
    p1(4, 8)
    k.label('KB_P1E')
    k('s_waitcnt lgkmcnt(0)'); k('s_barrier')
    st(6)
    vE, vLa, vBa, vLm, vBm, vFr, vR, vB2, vRow = 64, 65, 66, 67, 68, 69, 70, 71, 72
    k.label('KB_P2')
    k(f's_cmp_ge_u32 s{sTmp2}, s{sTmp3}'); k('s_cbranch_scc1 KB_P2E')
    k(f'v_lshl_add_u32 v3, v1, 2, s{sTmp2}')
    k(f'v_cmp_gt_u32 vcc, s{sTmp3}, v3'); k('s_mov_b64 exec, vcc')
    k(f'ds_read_b32 v{vE}, v3')
    k(f's_add_u32 s{sTmp2}, s{sTmp2}, 256')
    k('s_waitcnt lgkmcnt(0)')
    k(f'v_lshrrev_b32 v{vLa}, 21, v{vE}'); k(f'v_add_u32 v{vLa}, v6, v{vLa}')
    k(f'ds_read_b32 v{vLm}, v{vLa}')
    k(f'v_and_b32 v3, 31, v{vE}'); k(f'v_lshrrev_b32 v4, 28, v{vE}'); k('v_lshl_or_b32 v3, v4, 5, v3')
    k(f'v_lshl_add_u32 v{vBa}, v3, 2, v6')
    k(f'ds_read_b32 v{vBm}, v{vBa} offset:256')
    k(f'v_lshrrev_b32 v{vRow}, 23, v{vE}'); k(f'v_lshlrev_b32 v{vRow}, 8, v{vRow}'); k(f'v_add_u32 v{vRow}, {IMG}, v{vRow}')
    k(f'v_lshrrev_b32 v{vR}, 5, v{vE}'); k(f'v_mul_u32_u24 v{vR}, 7, v{vR}'); k(f'v_add_u32 v{vR}, v{vR}, v1')
    k.label('KB_P2R')
    k('s_waitcnt lgkmcnt(0)')
    k(f'v_or_b32 v{vFr}, v{vLm}, v{vBm}')
    k(f'v_cmp_eq_u32 vcc, -1, v{vFr}'); k(f'v_cndmask_b32 v{vFr}, v{vFr}, v{vLm}, vcc')
    k(f'v_not_b32 v{vFr}, v{vFr}')
    k(f'v_cmp_eq_u32 vcc, 0, v{vFr}')
    k(f's_and_saveexec_b64 s[{sEx}:{sEx+1}], vcc'); k('s_cbranch_execz KB_P2N')
    k(f'ds_add_rtn_u32 v3, v{vLa}, v7 offset:512'); k('s_waitcnt lgkmcnt(0)')
    k(f'v_add_u32 v3, {S0}, v3'); k(f'v_cmp_gt_u32 s[{sM2}:{sM2+1}], {CAP}, v3')
    k(f'v_lshl_add_u32 v3, v3, 1, v{vRow}')
    k(f's_mov_b64 exec, s[{sM2}:{sM2+1}]')
    k(f'ds_write_b16 v3, v{vE}')
    k.label('KB_P2N')
    k(f's_andn2_b64 exec, s[{sEx}:{sEx+1}], vcc'); k('s_cbranch_execz KB_P2X')
    k(f'v_alignbit_b32 v3, v{vFr}, v{vFr}, v{vR}'); k('v_ffbl_b32 v3, v3'); k(f'v_add_u32 v3, v3, v{vR}'); k('v_and_b32 v3, 31, v3')
    k(f'v_lshlrev_b32 v{vB2}, v3, v7')
    k(f'ds_or_rtn_b32 v{vLm}, v{vLa}, v{vB2}')
    k(f'ds_read_b32 v{vBm}, v{vBa} offset:256')
    k(f'v_lshl_add_u32 v3, v3, 1, v{vRow}'); k(f'v_add_u32 v{vR}, 11, v{vR}')
    k('s_waitcnt lgkmcnt(1)')
    k(f'v_and_b32 v4, v{vLm}, v{vB2}'); k('v_cmp_eq_u32 vcc, 0, v4')
    k(f's_and_saveexec_b64 s[{sEx}:{sEx+1}], vcc')
    k(f'ds_write_b16 v3, v{vE}'); k(f'ds_or_b32 v{vBa}, v{vB2} offset:256')
    k(f's_andn2_b64 exec, s[{sEx}:{sEx+1}], vcc'); k('s_cbranch_execnz KB_P2R')
    k.label('KB_P2X')
    k('s_mov_b64 exec, -1')
    k('s_branch KB_P2')
    k.label('KB_P2E')
    k('s_waitcnt lgkmcnt(0)'); k('s_barrier')
    st(7)
    k(f's_cmp_ge_u32 s{sWave}, 5'); k('s_cbranch_scc1 KB_EX')
    k(f's_lshl_b32 s{sTmp}, s{sWave}, 4'); k(f's_add_u32 s{sTmp}, s{sTmp}, {IMG}')
    k(f'v_lshl_add_u32 v3, v1, 8, s{sTmp}'); k('ds_read_b128 v[64:67], v3')
    k('v_lshl_add_u32 v4, v1, 2, v6'); k('ds_read_b32 v5, v4 offset:512')
    k(f's_mul_i32 s{sTmp}, s2, 5120'); k(f's_lshl_b32 s{sTmp2}, s{sWave}, 10'); k(f's_add_u32 s{sTmp}, s{sTmp}, s{sTmp2}')
    k(f's_add_u32 s{sTmp}, s{sTmp}, {ELL}')
    k('s_waitcnt lgkmcnt(1)')
    k(f'buffer_store_dwordx4 v[64:67], v2, s[{sF}:{sF+3}], s{sTmp} offen sc1')
    k('s_waitcnt lgkmcnt(0)')
    allreduce16(k, 'v_max_u32', 5); xrow_reduce(k, 'v_max_u32', 5, 4)
    k(f'v_readfirstlane_b32 s{sTmp2}, v5')
    k(f's_add_u32 s{sTmp2}, s{sTmp2}, {S0}'); k(f's_cmp_gt_u32 s{sTmp2}, {CAP}'); k(f's_cmov_b32 s{sTmp2}, 63')
    k(f's_or_b32 s{sTmp2}, s{sTmp2}, s{sSlow}')
    k.label('KB_EX')
    k(f's_lshl_b32 s{sTmp}, s2, 6'); k(f's_add_u32 s{sTmp}, s{sTmp}, {BF}')
    k('s_waitcnt vmcnt(0)'); k('s_barrier')
    km_a.publish(c, sTmp, f's{sTmp2}', 'KB_BP')
    st(8)
    k.label('KB_DONE')
    k(f's_lshl_b32 s{sTmp}, s{sQuad}, 9'); k(f's_add_u32 s{sTmp}, s{sTmp}, {XC}')
    k(f'v_mov_b32 v{vFl}, s{sXcc}')
    poll('KI_XP', f's{sTmp}', 0, '0xff')
    k(f'v_cmp_ne_u32 vcc, s{sXcc}, v{vFl}'); k('s_cmp_eq_u64 vcc, 0'); k(f's_cselect_b32 s{sMode}, {1 - force_global}, 0')
    k(f's_mul_i32 s{sTmp}, s{sWave}, {20*FS}'); k(f's_add_u32 s{sTmp}, s{sTmp}, {TF}')
    k(f's_mov_b32 s{sEx}, 0xfffff'); k(f's_cmp_eq_u32 s{sWave}, 7'); k(f's_cmov_b32 s{sEx}, 0x1ffff'); k(f's_mov_b32 s{sEx+1}, 0')
    poll('KB_TP', f's{sTmp}', 0, f's[{sEx}:{sEx+1}]')
    k(f'v_lshrrev_b32 v3, 2, v{vGA}')
    for i in range(3): k(f'buffer_load_ushort v{vD+i}, v3, s[{sT}:{sT+3}], 0 offen offset:{1024*i}')
    fill('KB_F')
    k(f's_mul_i32 s{sTmp}, s{sPart}, {20*FS}'); k(f's_add_u32 s{sTmp}, s{sTmp}, {BF}')
    k(f's_mov_b32 s{sEx}, 0xfffff'); k(f's_cmp_eq_u32 s{sPart}, 7'); k(f's_cmov_b32 s{sEx}, 0x1ffff'); k(f's_mov_b32 s{sEx+1}, 0')
    k(f'v_mov_b32 v{vFl}, 0')
    poll('KI_BP', f's{sTmp}', 0, f's[{sEx}:{sEx+1}]')
    st(9)
    k(f'v_cmp_lt_u32 vcc, {CAP}, v{vFl}'); k('s_cmp_lg_u64 vcc, 0'); k(f's_cselect_b32 s{sSlow}, 1, {force_slow}')
    k(f's_add_u32 s{sTmp}, s{sWave}, 8'); k(f's_add_u32 s{sTmp2}, s{sWave}, 16')
    k(f'v_readlane_b32 s{sSt}, v{vFl}, s{sWave}'); k(f'v_readlane_b32 s{sSt+1}, v{vFl}, s{sTmp}'); k(f'v_readlane_b32 s{sSt+2}, v{vFl}, s{sTmp2}')
    k(f's_cmp_lg_u32 s{sSlow}, 0')
    for i in range(3): k(f's_cmov_b32 s{sSt+i}, 0')
    k(f's_mul_i32 s{sTmp}, s{sPart}, 20'); k(f's_add_u32 s{sTmp}, s{sTmp}, s{sWave}'); k(f's_mul_i32 s{sTmp}, s{sTmp}, 5120')
    k(f's_add_u32 s{sTmp}, s{sTmp}, {ELL}')
    for i in range(3):
        k(f's_cmp_eq_u32 s{sSt+i}, 0'); k(f's_cbranch_scc1 KI_L{i}')
        for b in range(4):
            k(f'buffer_load_dwordx4 {V(vI+20*i+4*b,4)}, v2, s[{sF}:{sF+3}], s{sTmp} offen offset:{1024*b} sc1')
        k(f's_cmp_le_u32 s{sSt+i}, 32'); k(f's_cbranch_scc1 KI_L{i}')
        k(f's_add_u32 s{sTmp2}, s{sTmp}, 4096')
        k(f'buffer_load_dwordx4 {V(vI+20*i+16,4)}, v2, s[{sF}:{sF+3}], s{sTmp2} offen sc1')
        k.label(f'KI_L{i}')
        if i < 2: k(f's_add_u32 s{sTmp}, s{sTmp}, {8*5120}')
    sHM = 64
    for i in range(3):
        k(f'v_cmp_gt_u32 vcc, {80000 - 4096*i}, v{vGA}'); k(f's_mov_b64 s[{sHM+6+2*i}:{sHM+7+2*i}], vcc'); k(f's_mov_b64 s[{sHM+2*i}:{sHM+1+2*i}], 0')
    k(f's_cmp_ge_u32 s{sWave}, 4'); k(f's_cmov_b64 s[{sHM+10}:{sHM+11}], 0')
    k(f's_mov_b32 s{sHop}, 1'); k(f's_mov_b32 s{sTk}, 0')
    for i in range(3): k(f's_mov_b32 s{sHo+i}, {hx(i * 64 * 2048 - HSZ)}')
    k(f's_lshl_b32 s{sHFW}, s{sPart}, 5'); k(f's_add_u32 s{sHFW}, s{sHFW}, s{sQuad}'); k(f's_lshl_b32 s{sHFW}, s{sHFW}, 6')
    k(f's_add_u32 s{sHFW}, s{sHFW}, {HF}')
    k(f's_lshr_b32 s{sHFR}, s2, 5'); k(f's_lshl_b32 s{sHFR}, s{sHFR}, 11'); k(f's_add_u32 s{sHFR}, s{sHFR}, {HF}')
    k(f's_and_b32 s{sTmp}, s{sWave}, 3')
    k(f's_mul_i32 s{sTokG}, s2, 5'); k(f's_add_u32 s{sTokG}, s{sTokG}, s{sTmp}'); k(f's_lshl_b32 s{sTokG}, s{sTokG}, 11')
    k(f's_mul_i32 s{sTokL}, s{sTmp}, {GSTR}')
    k(f's_cmp_lt_u32 s{sWave}, 4'); k(f's_cmov_b32 s{sTk}, 8')
    k('s_cmp_ge_u32 s2, 250'); k(f's_cmov_b32 s{sTk}, 8')
    k(f'v_mov_b32 v{vFl}, 0'); k(f'v_mov_b32 v{vFl+1}, 0')
    for r in range(12): k(f'v_mov_b32 v{vAcc+r}, 0')
    def set_gw():
        k(f's_and_b32 s{sTmp}, s{sHop}, 1'); k(f's_add_u32 s{sTmp}, s{sTmp}, 1'); k(f's_add_u32 s{sTmp2}, s{sHop}, 2')
        k(f's_cmp_eq_u32 s{sMode}, 0'); k(f's_cmov_b32 s{sTmp}, s{sTmp2}')
        k(f's_mul_i32 s{sTmp}, s{sTmp}, {GSZ}'); k(f's_add_u32 s{sTmp}, s{sTmp}, s{sQoff}')
        k(f's_add_u32 s{sGW}, s{sWS}, s{sTmp}'); k(f's_addc_u32 s{sGW+1}, s{sWS+1}, 0')
    set_gw()
    k('s_waitcnt vmcnt(0)')
    for i in range(3):
        k(f'v_lshlrev_b32 v{vD+i}, 16, v{vD+i}'); k(f'v_mul_f32 v{vD2+i}, v{vD+i}, v{vD+i}')
    k('s_barrier')
    hmap = opts.get('hs', '012345')
    def hst(j):
        j = hmap.find(str(j))
        if st.on and j >= 0:
            k(f's_mul_i32 s{sSI}, s{sHop}, 6'); k(f's_add_u32 m0, s{sSI}, {4+j}'); k('s_nop 3'); st('m0')
    uid = [0]
    def tok_dma():
        uid[0] += 1; t = f'KTD{uid[0]}'
        k(f's_sub_u32 s{sTmp}, s{sTk}, 1'); k(f's_mul_i32 s{sTmp}, s{sTmp}, {HSZ}'); k(f's_add_u32 s{sTmp}, s{sTmp}, s{sTokG}')
        k(f's_mul_i32 s{sTmp2}, s{sTk}, {TSTR}'); k(f's_add_u32 s{sTmp2}, s{sTmp2}, {TOKB}')
        k(f's_cmp_eq_u32 s{sTk}, 7'); k(f's_cmov_b32 s{sTmp2}, {T7B}')
        k(f's_add_u32 m0, s{sTmp2}, s{sTokL}')
        k(f's_add_u32 s{sTk}, s{sTk}, 1')
        k(f'buffer_load_dwordx4 v2, s[{sH}:{sH+3}], s{sTmp} offen sc1 lds')
        k(f'buffer_load_dwordx4 v2, s[{sH}:{sH+3}], s{sTmp} offen offset:1024 sc1 lds')
        k(f's_cmp_lg_u32 s{sWave}, 4'); k(f's_cbranch_scc1 {t}')
        k(f's_add_u32 m0, s{sTmp2}, {4*GSTR}'); k(f's_add_u32 s{sTmp}, s{sTmp}, 8192')
        k(f'buffer_load_dwordx4 v2, s[{sH}:{sH+3}], s{sTmp} offen sc1 lds')
        k(f'buffer_load_dwordx4 v2, s[{sH}:{sH+3}], s{sTmp} offen offset:1024 sc1 lds')
        k.label(t)
    def tok0():
        uid[0] += 1; t = f'KT0{uid[0]}'
        k(f's_add_u32 s{sTmp2}, s{sTokL}, {TOKB}'); k(f's_mov_b32 s{sTmp}, s{sTokG}'); k(f's_mov_b32 s{sCnt}, 0')
        k.label(t)
        k(f's_mov_b32 m0, s{sTmp2}')
        k(f's_add_u32 s{sTmp2}, s{sTmp2}, 256')
        k(f'buffer_load_dword v{vX0}, s[{sX}:{sX+3}], s{sTmp} offen lds')
        k(f's_add_u32 s{sTmp}, s{sTmp}, 32'); k(f's_add_u32 s{sCnt}, s{sCnt}, 1')
        k(f's_and_b32 s{sTk}, s{sCnt}, 7'); k(f's_cbranch_scc1 {t}')
        k(f's_add_u32 s{sTmp2}, s{sTmp2}, {4*GSTR - 2048}'); k(f's_add_u32 s{sTmp}, s{sTmp}, {8192 - 256}')
        k(f's_cmp_lg_u32 s{sWave}, 4'); k(f's_cbranch_scc1 {t}E')
        k(f's_cmp_eq_u32 s{sCnt}, 8'); k(f's_cbranch_scc1 {t}')
        k.label(t + 'E')
        k(f's_mov_b32 s{sTk}, 1')
    def h_store(i, mask):
        k(f's_mov_b64 exec, s[{mask}:{mask+1}]')
        k(f'buffer_store_dwordx2 {V(vHp+2*i,2)}, v{vHA}, s[{sH}:{sH+3}], s{sHo+i} offen sc1')
        k('s_mov_b64 exec, -1')
    def scale(acc, d, dst, tmp):
        for r in range(4): k(f'v_mul_f32 v{tmp+r}, v{acc+r}, v{d}')
        k(f'v_cvt_pk_bf16_f32 v{dst}, v{tmp}, v{tmp+1}'); k(f'v_cvt_pk_bf16_f32 v{dst+1}, v{tmp+2}, v{tmp+3}')
    vTm = 124
    def epi(i, tag):
        acc = vAcc + 4 * i
        k(f's_cmp_eq_u32 s{sHop}, 7'); k(f's_cbranch_scc1 {tag}_7')
        scale(acc, vD2 + i, vGp, 4)
        if i: k(f's_movk_i32 s{sTmp}, {4096*i}')
        dual(lambda fl: k(f'buffer_store_dwordx2 {V(vGp,2)}, v{vGA}, s[{sGW}:{sGW+3}], {"s%d" % sTmp if i else "0"} offen{fl}'), tag + 'S')
        k(f's_branch {tag}_E')
        k.label(f'{tag}_7')
        scale(acc, vD + i, vHp + 2 * i, 4)
        k(f's_add_u32 s{sHo+i}, s{sHo+i}, {HSZ}')
        h_store(i, sHM + 6 + 2 * i)
        k.label(f'{tag}_E')
    def issue(i, gi, slot):
        b = vBuf + 8 * slot; vi = vI + 20 * i
        for j in range(4):
            s_ = 4 * gi + j
            k(f'v_lshlrev_b32_sdwa v{vAd+j}, 3, v{vi+s_//2} dst_sel:DWORD dst_unused:UNUSED_PAD src0_sel:DWORD src1_sel:WORD_{s_%2}')
        for j in range(4): k(f'ds_read_b64 {V(b+2*j,2)}, v{vAd+j}')
    def acc2(i, slot):
        b = vBuf + 8 * slot
        for h in range(2):
            k(f'v_mfma_f32_16x16x32_bf16 {V(vAcc+4*i,4)}, {V(vSel,4)}, {V(b+4*h,4)}, {V(vAcc+4*i,4)}')

    k.label('KH')
    hst(0)
    k(f's_cmp_lt_u32 s{sWave}, 4'); k('s_cbranch_scc1 KH_NOT')
    k(f's_cmp_lg_u32 s{sWave}, 7'); k('s_cbranch_scc1 KH_NHF')
    k(f's_cmp_lt_u32 s{sHop}, 3'); k('s_cbranch_scc1 KH_NHF')
    k(f's_add_u32 s{sCnt}, s{sTag0}, s{sHop}'); k(f's_sub_u32 s{sCnt}, s{sCnt}, 2')
    k(f'v_mov_b32 v4, s{sCnt}'); k(f'v_mov_b32 v5, s{sTag1}'); k('v_mov_b32 v3, 0')
    k('s_mov_b64 exec, 1')
    k(f'buffer_store_dwordx2 v[4:5], v3, s[{sF}:{sF+3}], s{sHFW} offen sc1')
    k('s_mov_b64 exec, -1')
    k.label('KH_NHF')
    k(f's_cmp_lg_u32 s{sWave}, 6'); k('s_cbranch_scc1 KH_NWP')
    k(f's_cmp_lg_u32 s{sHop}, 2'); k('s_cbranch_scc1 KH_NWP')
    k(f's_mov_b32 s{sTmp}, {WF}')
    poll('KH_WP', f's{sTmp}', 0, '3', vdst=vGp)
    k.label('KH_NWP')
    k(f's_cmp_lg_u32 s{sSlow}, 0'); k('s_cbranch_scc1 KH_NOT')
    k(f's_cmp_ge_u32 s{sTk}, 7'); k('s_cbranch_scc1 KH_NOT')
    k(f's_cmp_lg_u32 s{sTk}, 0'); k('s_cbranch_scc1 KH_T1')
    tok0()
    k('s_branch KH_T3')
    k.label('KH_T1')
    for rep in range(2):
        k(f's_add_u32 s{sTK}, s{sTag0}, s{sTk}')
        k(f'v_subrev_u32 v3, s{sTK}, v{vFl}'); k('v_cmp_gt_u32 vcc, 64, v3')
        k(f'v_cmp_eq_u32 s[{sM2}:{sM2+1}], s{sTag1}, v{vFl+1}'); k(f's_and_b64 vcc, vcc, s[{sM2}:{sM2+1}]')
        k('s_cmp_eq_u32 vcc_lo, -1'); k('s_cbranch_scc0 KH_T3')
        tok_dma()
        if rep == 0: k(f's_cmp_ge_u32 s{sTk}, 7'); k('s_cbranch_scc1 KH_NOT')
    k.label('KH_T3')
    k('s_mov_b32 exec_hi, 0')
    k(f'buffer_load_dwordx2 {V(vFl,2)}, v{vHF}, s[{sF}:{sF+3}], s{sHFR} offen sc1')
    k('s_mov_b64 exec, -1')
    k.label('KH_NOT')
    k(f's_cmp_lg_u32 s{sSlow}, 0'); k('s_cbranch_scc1 KH_SLOW')
    k(f's_max_u32 s{sTmp}, s{sSt}, s{sSt+1}'); k(f's_max_u32 s{sTmp}, s{sTmp}, s{sSt+2}')
    k(f's_cmp_gt_u32 s{sTmp}, {S0}'); k('s_cbranch_scc1 KH_XTRA')
    k.label('KH_MAIN')
    hst(6)
    G = S0 // 4
    items = [(i, g) for i in range(3) for g in range(G)]
    issue(0, 0, 0)
    for n, (i, g) in enumerate(items):
        if n == 2 * G - 1:
            k(f's_cmp_eq_u32 s{sSt+2}, 0'); k('s_cbranch_scc1 KH_TWO')
        if n + 1 < len(items):
            issue(*items[n + 1], (n + 1) % 2); k('s_waitcnt lgkmcnt(4)')
        else: k('s_waitcnt lgkmcnt(0)')
        acc2(i, n % 2)
        if i == 0 and g in (1, 3, 5): h_store(g // 2, sHM + 2 * (g // 2))
        if i > 0 and g == 0: epi(i - 1, f'KE{i-1}')
    epi(2, 'KE2')
    k('s_branch KH_GD')
    k.label('KH_TWO')
    k('s_waitcnt lgkmcnt(0)'); acc2(1, (2 * G - 1) % 2)
    epi(1, 'KE1B')
    k.label('KH_GD')
    hst(1)
    k(f's_mov_b32 s{sGR}, s{sGW}'); k(f's_mov_b32 s{sGR+1}, s{sGW+1}')
    k(f's_add_u32 s{sTmp2}, s{sSlotW}, {HOPF}')
    k(f's_add_u32 s{sCnt}, s{sTag0}, s{sHop}')
    k(f'v_mov_b32 v4, s{sCnt}'); k(f'v_mov_b32 v5, s{sTag1}'); k('v_mov_b32 v3, 0')
    k(f's_add_u32 s{sTmp3}, s{sSlotR}, {HOPF}')
    k('s_waitcnt vmcnt(0)'); hst(2); k('s_barrier'); hst(3)
    k(f's_cmp_eq_u32 s{sHop}, 7'); k('s_cbranch_scc1 KT')
    k(f's_cmp_lg_u32 s{sWave}, 0'); k('s_cbranch_scc1 KH_NF')
    k('s_mov_b64 exec, 1')
    dual(lambda fl: k(f'buffer_store_dwordx2 v[4:5], v3, s[{sF}:{sF+3}], s{sTmp2} offen{fl}'), 'KH_HFS')
    k('s_mov_b64 exec, -1')
    k.label('KH_NF')
    poll('KH_HP', f's{sTmp3}', f's{sHop}', '1', vdst=vGp)
    hst(4)
    fill('KH_F')
    for i in range(3):
        scale(vAcc + 4 * i, vD + i, vHp + 2 * i, 4)
        k(f's_add_u32 s{sHo+i}, s{sHo+i}, {HSZ}'); k(f's_mov_b64 s[{sHM+2*i}:{sHM+1+2*i}], s[{sHM+6+2*i}:{sHM+7+2*i}]')
    for r in range(12): k(f'v_mov_b32 v{vAcc+r}, 0')
    k(f's_add_u32 s{sHop}, s{sHop}, 1')
    set_gw()
    k('s_waitcnt vmcnt(0)')
    if st.on: k(f's_sub_u32 s{sHop}, s{sHop}, 1'); hst(5); k(f's_add_u32 s{sHop}, s{sHop}, 1')
    k('s_barrier')
    k('s_branch KH')
    k.label('KH_XTRA')
    for i in range(3):
        for g in range(G, CAP // 4):
            k(f's_cmp_le_u32 s{sSt+i}, {4*g}'); k(f's_cbranch_scc1 KX{i}')
            issue(i, g, 0); k('s_waitcnt lgkmcnt(0)'); acc2(i, 0)
        k.label(f'KX{i}')
    k('s_branch KH_MAIN')

    k.label('KH_SLOW')
    ACC = TOKB
    k('s_load_dwordx4 s[84:87], s[0:1], 8')
    for i in range(3): h_store(i, sHM + 2 * i)
    k(f'v_lshlrev_b32 v6, 4, v0'); k(f'v_add_u32 v6, {ACC}, v6')
    for r in range(4): k(f'v_mov_b32 v{vBuf+r}, 0')
    for n in range(3): k(f'ds_write_b128 v6, {V(vBuf,4)} offset:{8192*n}')
    k(f's_mul_i32 s{sTmp3}, s{sPart}, 1280')
    k('v_lshlrev_b32 v7, 2, v0')
    k(f's_mov_b32 s{sCnt}, 0')
    k('s_waitcnt lgkmcnt(0)')
    srd(k, sT, 84, 0, 640000); srd(k, sT2, 86, 0, 640000)
    k('s_barrier')
    k.label('KS_L')
    k(f'buffer_load_dword v{vBuf}, v7, s[{sT2}:{sT2+3}], s{sCnt} offen')
    k(f'buffer_load_dword v{vBuf+1}, v7, s[{sT}:{sT+3}], s{sCnt} offen')
    k(f'v_add_u32 v3, s{sCnt}, v7')
    k(f'v_cmp_gt_u32 s[{sEx}:{sEx+1}], s{sT+2}, v3')
    k('s_waitcnt vmcnt(0)')
    k(f'v_subrev_u32 v{vBuf}, s{sTmp3}, v{vBuf}')
    k(f'v_cmp_gt_u32 vcc, 1280, v{vBuf}')
    k(f's_and_b64 exec, vcc, s[{sEx}:{sEx+1}]')
    k(f'v_lshlrev_b32 v{vBuf+1}, 3, v{vBuf+1}')
    k(f'ds_read_b64 {V(vBuf+2,2)}, v{vBuf+1}')
    k(f'v_lshlrev_b32 v{vBuf}, 4, v{vBuf}'); k(f'v_add_u32 v{vBuf}, {ACC}, v{vBuf}')
    k('s_waitcnt lgkmcnt(0)')
    k(f'v_lshlrev_b32 v{vBuf+4}, 16, v{vBuf+2}'); k(f'v_and_b32 v{vBuf+5}, 0xffff0000, v{vBuf+2}')
    k(f'v_lshlrev_b32 v{vBuf+6}, 16, v{vBuf+3}'); k(f'v_and_b32 v{vBuf+7}, 0xffff0000, v{vBuf+3}')
    for r in range(4): k(f'ds_add_f32 v{vBuf}, v{vBuf+4+r} offset:{4*r}')
    k('s_mov_b64 exec, -1')
    k(f's_add_u32 s{sCnt}, s{sCnt}, 2048'); k(f's_cmp_lt_u32 s{sCnt}, 640000'); k('s_cbranch_scc1 KS_L')
    k('s_waitcnt lgkmcnt(0)'); k('s_barrier')
    for i in range(3): k(f'ds_read_b128 {V(vAcc+4*i,4)}, v6 offset:{8192*i}')
    k('s_waitcnt lgkmcnt(0)')
    for i in range(3):
        if i == 2: k(f's_cmp_ge_u32 s{sWave}, 4'); k('s_cbranch_scc1 KH_GD')
        epi(i, f'KSE{i}')
    k('s_branch KH_GD')

    k.label('KT')
    k(f's_cmp_lg_u32 s{sWave}, 7'); k('s_cbranch_scc1 KT_NF')
    k('s_mov_b64 exec, 1')
    k(f'buffer_store_dwordx2 v[4:5], v3, s[{sF}:{sF+3}], s{sHFW} offen sc1')
    k('s_mov_b64 exec, -1')
    k.label('KT_NF')
    k('s_cmp_ge_u32 s2, 250'); k('s_cbranch_scc1 K_FIN')
    def tail_tokens():
        k(f's_cmp_lg_u32 s{sTk}, 0'); k('s_cbranch_scc1 KT_T1')
        tok0()
        k.label('KT_T1')
        poll('KT_HP', f's{sHFR}', 7, 'lo32', vdst=120)
        st(52)
        k.label('KT_T2')
        tok_dma()
        k(f's_cmp_lt_u32 s{sTk}, 8'); k('s_cbranch_scc1 KT_T2')
    c.tail_tokens = tail_tokens
    transformer(c)
    k.label('K_FIN')
    k('s_cmp_lg_u32 s2, 0'); k('s_cbranch_scc1 K_FIN2')
    k(f's_cmp_lg_u32 s{sWave}, 4'); k('s_cbranch_scc1 K_FIN2')
    k(f'v_mov_b32 v4, s{sNon}'); k('v_mov_b32 v3, 0'); k('s_mov_b64 exec, 1')
    k(f'buffer_store_dword v4, v3, s[{sF}:{sF+3}], 0 offen')
    k.label('K_FIN2')
    if st.on:
        k('s_waitcnt vmcnt(0)'); st(61); st.clk(63)
        if opts.get('dbg'):
            wg, wv = opts['dbg'].split(',')
            k(f's_cmp_lg_u32 s2, {wg}'); k('s_cbranch_scc1 K_END'); k(f's_cmp_lg_u32 s{sWave}, {wv}'); k('s_cbranch_scc1 K_END')
            k('s_load_dwordx2 s[84:85], s[0:1], 80'); k('s_mov_b64 exec, -1')
            k('v_mov_b32 v3, 4096')
            for p, j in enumerate((1, 2, 3, 4, 5, 6, 7, 8, 9, 10, 16, 22, 46, 49, 54, 61)):
                k(f'v_mov_b32 v4, {4*p}'); k(f'v_cmp_eq_u32 vcc, {j}, v1'); k('v_cndmask_b32 v3, v3, v4, vcc')
            k('v_readlane_b32 s86, v127, 0'); k('v_subrev_u32 v127, s86, v127')
            k('s_waitcnt lgkmcnt(0)')
            srd(k, sT, 84, 0, 64)
            k(f'buffer_store_dword v127, v3, s[{sT}:{sT+3}], 0 offen')
        else: st.flush(sWS, sWave, 3)
    k.label('K_END')
    k('s_endpgm')
    return k

def build(opts):
    hdr = open('cdna_kernels/%s.s.ref' % NAME).read().split('\n')
    hdr = [l for l in hdr if l.startswith(';') and '@launch' not in l]
    k = gen(opts); k.finalize()
    nm = NAME + '_kernel'
    out = hdr + ['; @launch grid=(256,1,1) block=(512,1,1) lds=%d' % LDS_BYTES, '.amdgcn_target "amdgcn-amd-amdhsa--gfx950"', '.text',
                 '.globl %s' % nm, '.p2align 8', '.type %s,@function' % nm, nm + ':', k.text(),
                 '.section .rodata,"a"', '.p2align 6', desc(nm, 256, 100, 256)]
    return '\n'.join(out) + '\n'

if __name__ == '__main__':
    path = sys.argv[1]
    opts = dict(a.split('=') for a in sys.argv[2:] if '=' in a)
    open(path, 'w').write(build(opts)); print('wrote', path)
```

```python
import re

def split_ops(s):
    out, depth, cur = [], 0, ''
    for ch in s:
        if ch in '[(': depth += 1
        if ch in '])': depth -= 1
        if ch == ',' and depth == 0:
            out.append(cur.strip()); cur = ''
        else:
            cur += ch
    if cur.strip(): out.append(cur.strip())
    return out

_reg = re.compile(r'^(-|\|)?(?:abs\()?([vas])(?:(\d+)|\[(\d+):(\d+)\])\)?\|?$')
def regs(tok):
    tok = tok.strip()
    if tok == 'vcc': return {('s', 106), ('s', 107)}
    if tok == 'vcc_lo': return {('s', 106)}
    if tok == 'vcc_hi': return {('s', 107)}
    if tok == 'exec': return {('s', 126), ('s', 127)}
    if tok == 'exec_lo': return {('s', 126)}
    if tok == 'exec_hi': return {('s', 127)}
    if tok == 'm0': return {('s', 124)}
    m = _reg.match(tok)
    if not m: return set()
    k = m.group(2)
    if m.group(3) is not None:
        return {(k, int(m.group(3)))}
    return {(k, i) for i in range(int(m.group(4)), int(m.group(5)) + 1)}

TRANS = ('v_exp_f32', 'v_log_f32', 'v_rcp_f32', 'v_rsq_f32', 'v_sqrt_f32', 'v_sin_f32', 'v_cos_f32', 'v_rcp_iflag_f32')

class Ins:
    def __init__(self, text):
        self.text = text
        t = text.split(';')[0].strip()
        self.label = None
        self.mn = ''
        self.defs = set(); self.uses = set()
        self.kind = 'other'
        self.target = None
        if t.endswith(':'):
            self.label = t[:-1]; self.kind = 'label'; return
        if not t or t.startswith('.'):
            self.kind = 'dir'; return
        parts = t.split(None, 1)
        mn = parts[0]; self.mn = mn
        rest = parts[1] if len(parts) > 1 else ''
        ops = split_ops(rest)
        mods = ''
        if ops:
            sp = ops[-1].split(None, 1)
            if len(sp) == 2 and not sp[0].endswith('('):
                ops[-1] = sp[0]; mods = sp[1]
        self.ops = ops; self.mods = mods
        R = [regs(o) for o in ops]
        base = re.sub(r'_(e32|e64|dpp|sdwa)$', '', mn)
        self.base = base
        self.dpp = mn.endswith('_dpp') or 'row_' in mods or 'quad_perm' in mods
        if mn.startswith('v_smfmac'):
            self.kind = 'mfma'
            self.defs = R[0]; self.A = R[1] | R[3]; self.B = R[2]; self.C = R[0]
            self.uses = R[0] | R[1] | R[2] | R[3]
            self.passes = 8
        elif mn.startswith('v_mfma'):
            self.kind = 'mfma'
            self.defs = R[0]; self.A = R[1]; self.B = R[2]; self.C = R[3]
            self.uses = R[1] | R[2] | R[3]
            self.passes = 8 if '32x32' in mn else 4
        elif mn.startswith('v_'):
            self.kind = 'valu'
            self.trans = base in TRANS
            nd = 1
            if base in ('v_add_co_u32', 'v_sub_co_u32', 'v_addc_co_u32', 'v_subb_co_u32', 'v_subrev_co_u32', 'v_mad_u64_u32', 'v_div_scale_f32'): nd = 2
            if base.startswith('v_nop'): nd = 0
            for r in R[:nd]: self.defs |= r
            for r in R[nd:]: self.uses |= r
            if base.startswith(('v_fmac', 'v_dot2c', 'v_mac', 'v_writelane')) or self.dpp or 'UNUSED_PRESERVE' in mods: self.uses |= R[0]
            if base.startswith('v_permlane') and 'swap' in base:
                self.defs = R[0] | R[1]; self.uses = R[0] | R[1]
            if base.startswith('v_cmpx'): self.defs |= regs('exec')
        elif mn.startswith('ds_'):
            self.kind = 'ds'
            if mn.startswith(('ds_read', 'ds_bpermute', 'ds_permute', 'ds_swizzle')) or '_rtn' in mn:
                self.defs = R[0]
                for r in R[1:]: self.uses |= r
                if 'd16' in mn: self.uses |= R[0]
            else:
                for r in R: self.uses |= r
        elif mn.startswith(('buffer_', 'global_', 'flat_')):
            self.kind = 'vmem'
            self.lds = bool(re.search(r'\blds\b', mods)) or '_lds_' in mn
            isload = '_load' in mn
            isatomic = '_atomic' in mn
            if mn.startswith(('buffer_wbl2', 'buffer_inv')):
                pass
            elif isload and not self.lds:
                self.defs = R[0]
                for r in R[1:]: self.uses |= r
                if 'd16' in mn: self.uses |= R[0]
            elif isatomic and re.search(r'\bsc0\b', mods):
                self.defs = R[0]
                for r in R: self.uses |= r
            else:
                for r in R: self.uses |= r
            if self.lds: self.uses |= regs('m0')
            self.widestore = ('_store' in mn) and ('x3' in mn or 'x4' in mn)
            if self.widestore:
                self.sdata = R[0] if mn.startswith('buffer_') else R[1]
        elif mn.startswith('s_'):
            self.kind = 'salu'
            if mn.startswith(('s_cbranch', 's_branch')):
                self.kind = 'branch'; self.target = ops[0]
            elif mn in ('s_nop', 's_waitcnt', 's_barrier', 's_endpgm', 's_sleep', 's_setprio', 's_sethalt'):
                pass
            elif mn.startswith(('s_cmp', 's_bitcmp')):
                for r in R: self.uses |= r
            else:
                self.defs = R[0] if R else set()
                for r in R[1:]: self.uses |= r
                if 'saveexec' in mn: self.defs = self.defs | regs('exec')
    def states(self):
        if self.kind in ('label', 'dir'): return 0
        if self.mn == 's_nop': return int(self.ops[0], 0) + 1
        return 1

def vr(s): return {r for r in s if r[0] in 'va'}
def sr(s): return {r for r in s if r[0] == 's'}

def need(p, c):
    n = 0
    if p.kind == 'valu':
        pv = vr(p.defs); ps = sr(p.defs)
        if c.kind == 'mfma' and pv & c.uses: n = max(n, 2)
        if c.kind == 'mfma' and (ps & regs('exec')): n = max(n, 4)
        if c.kind == 'valu':
            if c.dpp and pv & c.uses: n = max(n, 2)
            if c.dpp and (ps & regs('exec')): n = max(n, 5)
            if c.base.startswith('v_permlane') and pv & c.uses: n = max(n, 2)
            if c.base in ('v_readlane_b32', 'v_readfirstlane_b32') and pv & c.uses: n = max(n, 1)
            if p.trans and (pv & c.uses): n = max(n, 1)
            if ps & c.uses:
                n = max(n, 4 if c.base in ('v_readlane_b32', 'v_writelane_b32', 'v_div_fmas_f32') else 2)
            if (ps & regs('exec')) and c.base in ('v_readlane_b32', 'v_readfirstlane_b32', 'v_writelane_b32'): n = max(n, 4)
            if ('sdwa' in p.mn and 'dst_sel:DWORD' not in p.mods or 'op_sel' in p.mods) and pv & (c.uses | c.defs): n = max(n, 1)
        if c.kind == 'vmem' and ps & c.uses: n = max(n, 5)
        if c.kind in ('salu', 'branch') and (ps & c.uses): n = max(n, 1)
    if p.kind == 'salu':
        if ('s', 124) in p.defs and c.kind == 'vmem' and getattr(c, 'lds', False): n = max(n, 1)
    if p.kind == 'vmem' and getattr(p, 'widestore', False):
        if c.kind in ('valu', 'mfma') and (p.sdata & c.defs): n = max(n, 2)
        elif p.sdata & c.defs: n = max(n, 1)
    if p.kind == 'mfma':
        big = p.passes == 8
        if c.kind == 'mfma':
            if p.defs & c.C:
                if not (p.defs == c.C and p.passes == c.passes): n = max(n, 10 if big else 6)
            if p.defs & (c.A | c.B): n = max(n, 12 if big else 8)
            if (p.defs & c.defs) and not (p.defs & c.C): n = max(n, 10 if big else 6)
        elif c.kind in ('valu', 'ds', 'vmem'):
            if p.defs & (c.uses | c.defs): n = max(n, 12 if big else 8)
            if c.kind == 'valu' and (p.C & c.defs): n = max(n, 7 if big else 3)
    return n

MAXW = 13

class Kern:
    def __init__(self):
        self.ins = []
    def __call__(self, text):
        for line in text.split('\n'):
            line = line.strip()
            if line: self.ins.append(Ins(line))
    def label(self, name): self.ins.append(Ins(name + ':'))
    def finalize(self):
        ins = self.ins
        i = 0
        nadded = 0
        while i < len(ins):
            c = ins[i]
            if c.kind in ('label', 'dir'):
                i += 1; continue
            req = 0
            stack = [(i - 1, 0)]
            seen = {}
            while stack:
                j, d = stack.pop()
                if j < 0 or d >= MAXW: continue
                if seen.get(j, 99) <= d: continue
                seen[j] = d
                p = ins[j]
                if p.kind == 'label':
                    for k, q in enumerate(ins):
                        if q.kind == 'branch' and q.target == p.label:
                            stack.append((k, d))
                    pj = j - 1
                    while pj >= 0 and ins[pj].kind == 'dir': pj -= 1
                    if pj >= 0 and ins[pj].mn not in ('s_branch', 's_endpgm'):
                        stack.append((pj, d))
                    continue
                if p.kind == 'dir':
                    stack.append((j - 1, d)); continue
                req = max(req, need(p, c) - d)
                pj = j - 1
                if pj >= 0 and not (ins[pj].mn in ('s_branch', 's_endpgm')):
                    stack.append((pj, d + p.states()))
            if req > 0:
                ins.insert(i, Ins('s_nop %d' % (req - 1)))
                nadded += 1
                i += 1
            i += 1
        return nadded
    def text(self):
        out = []
        for x in self.ins:
            out.append(x.text if x.kind == 'label' else '    ' + x.text)
        return '\n'.join(out)

class RegAlloc:
    def __init__(self, start=0, limit=256, kind='v'):
        self.n = start; self.limit = limit; self.kind = kind; self.names = {}
    def alloc(self, cnt=1, align=1, name=None):
        while self.n % align: self.n += 1
        b = self.n; self.n += cnt
        assert self.n <= self.limit, ('out of regs', self.kind, self.n, name)
        return b

def V(b, n=1): return 'v%d' % b if n == 1 else 'v[%d:%d]' % (b, b + n - 1)
def A(b, n=1): return 'a%d' % b if n == 1 else 'a[%d:%d]' % (b, b + n - 1)
def S(b, n=1): return 's%d' % b if n == 1 else 's[%d:%d]' % (b, b + n - 1)
```

```python
from km_common import *
import math
SCALE = LOG2E / math.sqrt(128.0)

def publish(c, soff_reg, payload, tag, flavour=' sc1', wave=0):
    k = c.k
    k(f's_cmp_lg_u32 s{c.sWave}, {wave}'); k(f's_cbranch_scc1 {tag}')
    k(f's_add_u32 s{c.sCnt}, s{c.sTag0}, {payload}')
    k(f'v_mov_b32 v4, s{c.sCnt}'); k(f'v_mov_b32 v5, s{c.sTag1}'); k('v_mov_b32 v3, 0')
    k('s_mov_b64 exec, 1')
    k(f'buffer_store_dwordx2 v[4:5], v3, s[{c.sF}:{c.sF+3}], s{soff_reg} offen{flavour}')
    k('s_mov_b64 exec, -1')
    k.label(tag)

def producer(c):
    k, st = c.k, c.st
    sS, sD = c.sT2, c.sGW
    CNT = 24576
    k('v_lshlrev_b32 v20, 4, v0')
    k(f's_sub_u32 s{c.sTmp3}, s2, {PBASE}'); k(f's_mul_i32 s{c.sTmp}, s{c.sTmp3}, {PEDGE*4}')
    srd(k, sS, 66, 0, 640000); srd(k, sD, 68, 0, 640000)
    vD, vS = 64, 68
    k(f'buffer_load_dwordx4 v[{vD}:{vD+3}], v20, s[{sD}:{sD+3}], s{c.sTmp} offen')
    k(f'buffer_load_dwordx4 v[{vS}:{vS+3}], v20, s[{sS}:{sS+3}], s{c.sTmp} offen')
    k(f'v_add_u32 v21, s{c.sTmp}, v20')
    k(f'v_cmp_gt_u32 vcc, {PEDGE//4}, v0'); k(f'v_cmp_gt_u32 s[64:65], s{sS+2}, v21'); k('s_and_b64 s[64:65], s[64:65], vcc')
    for i in range(4): k(f'v_mov_b32 v{80+i}, 0xff9f7fff')
    for n in range(3): k(f'ds_write_b128 v20, v[80:83] offset:{8192*n}')
    k('v_mov_b32 v84, 0'); k('v_lshlrev_b32 v85, 2, v0')
    k(f'ds_write_b32 v85, v84 offset:{CNT}')
    c.make_tag(); c.xcc_publish()
    c.early_setup()
    k('v_mov_b32 v84, 1'); k('v_mov_b32 v86, 0')
    k('s_waitcnt lgkmcnt(0)'); k('s_barrier')
    st(5)
    vP, vE, vA = 88, 96, 104
    k('s_mov_b64 exec, s[64:65]')
    k('s_waitcnt vmcnt(1)')
    st(4)
    for e in range(4):
        k(f'v_lshrrev_b32 v{vA+e}, 6, v{vD+e}'); k(f'v_lshlrev_b32 v{vE+e}, 2, v{vA+e}')
    for e in range(4): k(f'ds_add_rtn_u32 v{vP+e}, v{vE+e}, v84 offset:{CNT}')
    k('s_waitcnt vmcnt(0)')
    for e in range(4):
        k(f'v_sub_u32 v85, v{vS+e}, v{vD+e}'); k('v_and_b32 v85, 31, v85')
        k(f'v_lshl_or_b32 v{vE+e}, v85, 16, v{vS+e}')
        k(f'v_and_b32 v85, 63, v{vD+e}'); k(f'v_lshl_or_b32 v{vE+e}, v85, 23, v{vE+e}')
        k(f'v_lshlrev_b32 v{vA+e}, 7, v{vA+e}')
    for e in range(4):
        k('s_waitcnt lgkmcnt(3)')
        k(f'v_lshl_add_u32 v{vA+e}, v{vP+e}, 2, v{vA+e}')
        k(f'v_max_u32 v86, v86, v{vP+e}')
        k(f'v_cmp_gt_u32 vcc, {CCAP}, v{vP+e}')
        k('s_mov_b64 exec, vcc')
        k(f'ds_write_b32 v{vA+e}, v{vE+e}')
        k('s_mov_b64 exec, s[64:65]')
    k('s_mov_b64 exec, -1')
    k(f'v_cmp_le_u32 vcc, {CCAP}, v86'); k(f'v_mov_b32 v85, {CNT + 2044}')
    k('s_mov_b64 exec, vcc'); k('ds_write_b32 v85, v84'); k('s_mov_b64 exec, -1')
    k(f's_mul_i32 s{c.sTmp}, s{c.sTmp3}, {CSTR}'); k(f's_add_u32 s{c.sTmp}, s{c.sTmp}, {CELL}')
    k(f'v_cmp_gt_u32 s[66:67], s{c.sTmp}, v0' if False else f'v_cmp_gt_u32 vcc, {CIMG//16-1024}, v0')
    k('s_waitcnt lgkmcnt(0)'); k('s_barrier')
    for n in range(3): k(f'ds_read_b128 v[{64+4*n}:{67+4*n}], v20 offset:{8192*n}')
    k('ds_read_b32 v86, v85')
    for n in range(3):
        k(f's_waitcnt lgkmcnt({3-n})')
        if n == 2: k('s_and_saveexec_b64 s[66:67], vcc'); k('s_cbranch_execz KA_P4')
        k(f'buffer_store_dwordx4 v[{64+4*n}:{67+4*n}], v20, s[{c.sF}:{c.sF+3}], s{c.sTmp} offen sc1')
        if n < 2: k(f's_add_u32 s{c.sTmp}, s{c.sTmp}, 8192')
    k.label('KA_P4')
    k('s_mov_b64 exec, -1')
    k('s_waitcnt lgkmcnt(0)')
    k(f'v_readfirstlane_b32 s{c.sTmp2}, v86')
    k(f's_lshl_b32 s{c.sTmp}, s{c.sTmp3}, 6'); k(f's_add_u32 s{c.sTmp}, s{c.sTmp}, {PF}')
    k('s_waitcnt vmcnt(0)'); k('s_barrier')
    publish(c, c.sTmp, f's{c.sTmp2}', 'KA_PP')
    st(3)

def weights(c):
    k, st = c.k, c.st
    sA, sB = c.sT2, c.sGW
    vQ, vG = 20, 21
    SUMB = 65536
    COL, C0, C1, WP, KK, PART = [512 * i for i in range(5)] + [4096]
    k('s_cmp_eq_u32 s2, 255')
    k('s_cmov_b32 s72, s76'); k('s_cmov_b32 s73, s77'); k('s_cmov_b32 s74, s78'); k('s_cmov_b32 s75, s79')
    srd(k, sA, 72, 0, 32768); srd(k, sB, 74, 0, 32768); srd(k, 68, 80, 0, 256)
    k(f's_lshl_b32 s{c.sTmp}, s{c.sWave}, 12')
    for i in range(4): k(f'buffer_load_dwordx4 {V(64+4*i,4)}, v2, s[{sA}:{sA+3}], s{c.sTmp} offen offset:{1024*i}')
    for i in range(4): k(f'buffer_load_dwordx4 {V(80+4*i,4)}, v2, s[{sB}:{sB+3}], s{c.sTmp} offen offset:{1024*i}')
    k('v_lshlrev_b32 v3, 2, v1'); k('buffer_load_dword v26, v3, s[68:71], 0 offen')
    c.make_tag(); c.xcc_publish()
    c.early_setup(); c.slice_loads()
    k(f'v_and_b32 v{vQ}, 15, v1'); k(f'v_lshrrev_b32 v{vG}, 4, v1')
    k('v_lshlrev_b32 v3, 2, v0'); k(f'v_add_u32 v3, {SUMB}, v3'); k('v_mov_b32 v4, 0'); k(f'v_mov_b32 v5, {hx(f2u(1.0/128))}')
    k('ds_write_b32 v3, v4')
    k('ds_write_b32 v3, v5 offset:2048')
    k(f'v_lshl_add_u32 v7, v{vG}, 8, s{c.sTmp}')
    k(f'v_lshlrev_b32 v6, 1, v{vG}')
    k('s_cmp_eq_u32 s2, 255'); k('s_cselect_b64 s[76:77], -1, 0')
    for i in range(4):
        k(f'v_add_u32 v3, {4*i}, v{vG}'); k(f'v_add_u32 v4, {8*(i//2)}, v6')
        k('v_cndmask_b32 v4, v3, v4, s[76:77]')
        k(f'v_xor_b32 v3, v3, v{vQ}'); k(f'v_xor_b32 v4, v4, v{vQ}')
        k(f'v_lshl_add_u32 v{22+i}, v3, 4, v7'); k(f'v_lshl_add_u32 v{28+i}, v4, 4, v7')
    vAf, vBf, vDm = 64, 128, 80
    vSt = 27
    k(f'v_lshrrev_b32 v3, 1, v{vG}'); k(f'v_lshlrev_b32 v{vSt}, 8, v3')
    k(f'v_and_b32 v3, 1, v{vG}'); k(f'v_lshl_add_u32 v{vSt}, v3, 3, v{vSt}')
    k(f's_lshl_b32 s{c.sTmp2}, s{c.sWave}, 9'); k(f'v_add_u32 v{vSt}, s{c.sTmp2}, v{vSt}')
    k(f'v_lshlrev_b32 v112, 2, v{vQ}'); k(f'v_add_u32 v112, {SUMB}, v112')
    k('v_lshlrev_b32 v113, 3, v1'); k(f'v_add_u32 v113, {SUMB}, v113')
    k(f's_mov_b32 s72, {hx(f2u(1.0/128))}'); k(f's_mov_b32 s73, {hx(f2u(SCALE))}')
    c.slice_finish('KW')
    for i in range(4): k(f'ds_write_b128 v{22+i}, {V(64+4*i,4)} offset:{1024*i}')
    for i in range(4): k(f'ds_write_b128 v{28+i}, {V(80+4*i,4)} offset:{32768+1024*i}')
    k(f'v_xor_b32 v3, v{vG}, v{vQ}'); k('v_lshlrev_b32 v3, 4, v3'); k(f'v_lshl_add_u32 v22, v{vQ}, 8, v3')
    for cc in range(1, 4): k(f'v_xor_b32 v{22+cc}, {cc<<6}, v22')
    k('s_waitcnt vmcnt(0)')
    k('v_lshlrev_b32 v6, 16, v26'); k('v_and_b32 v7, 0xffff0000, v26')
    k('v_add_f32 v26, v6, v7'); allreduce16(k, 'v_add_f32', 26); xrow_reduce(k, 'v_add_f32', 26, 3)
    k('v_fma_f32 v6, -v26, s72, v6'); k('v_fma_f32 v7, -v26, s72, v7')
    k('s_waitcnt lgkmcnt(0)'); k('s_barrier')
    st(1)
    k(f'ds_write_b64 v113, v[6:7] offset:{WP}')
    for cc in range(4):
        k(f'v_add_u32 v3, s{c.sTmp}, v{22+cc}'); k(f'ds_read_b128 {V(vAf+4*cc,4)}, v3')
    k('s_cmp_eq_u32 s2, 255'); k('s_cbranch_scc1 KW_TR')
    for ct in range(8):
        for cc in range(4):
            k(f'ds_read_b128 {V(vBf+16*ct+4*cc,4)}, v{22+cc} offset:{32768+4096*ct}')
    k('s_branch KW_MM')
    k.label('KW_TR')
    k(f'v_lshrrev_b32 v3, 2, v{vQ}')
    k(f'v_and_b32 v4, 1, v{vG}'); k('v_lshlrev_b32 v4, 3, v4'); k('v_lshl_add_u32 v4, v3, 1, v4')
    k(f'v_bfe_u32 v5, v{vQ}, 1, 1'); k('v_xor_b32 v4, v4, v5'); k('v_lshlrev_b32 v4, 4, v4')
    k(f'v_lshl_add_u32 v3, v{vG}, 3, v3'); k('v_lshl_add_u32 v4, v3, 8, v4')
    k(f'v_and_b32 v5, 1, v{vQ}'); k('v_lshl_add_u32 v22, v5, 3, v4')
    for ct in range(8):
        k(f'v_xor_b32 v{28+ct%2}, {ct<<5}, v22')
        for h in range(2):
            for cc in range(4):
                k(f'ds_read_b64_tr_b16 {V(vBf+16*ct+4*cc+2*h,2)}, v{28+ct%2} offset:{32768+8192*cc+1024*h}')
    k.label('KW_MM')
    k('s_waitcnt lgkmcnt(0)')
    st(4)
    for ct in range(8):
        for cc in range(4):
            d = V(vDm + 4 * ct, 4)
            k(f'v_mfma_f32_16x16x32_bf16 {d}, {V(vAf+4*cc,4)}, {V(vBf+16*ct+4*cc,4)}, {"0" if cc == 0 else d}')
    for ct in range(8):
        d = vDm + 4 * ct
        k(f'v_add_f32 v3, v{d}, v{d+1}'); k(f'v_add_f32 v4, v{d+2}, v{d+3}'); k(f'v_add_f32 v{116+ct}, v3, v4')
    for i in range(4): k(f'v_permlane32_swap_b32 v{116+i}, v{120+i}')
    for i in range(4): k(f'v_add_f32 v{116+i}, v{116+i}, v{120+i}')
    for i in range(2): k(f'v_permlane16_swap_b32 v{116+i}, v{118+i}')
    for i in range(2): k(f'v_add_f32 v{116+i}, v{116+i}, v{118+i}')
    k(f'v_lshlrev_b32 v3, 5, v{vQ}'); k(f'v_lshl_add_u32 v3, v{vG}, 10, v3'); k(f's_lshl_b32 s{c.sTmp2}, s{c.sWave}, 2')
    k(f's_add_u32 s{c.sTmp2}, s{c.sTmp2}, {SUMB+PART}'); k(f'v_add_u32 v3, s{c.sTmp2}, v3')
    for i in range(2): k(f'ds_write_b32 v3, v{116+i} offset:{512*i}')
    def colsum():
        k(f'v_lshlrev_b32 v3, 5, v{vQ}'); k(f'v_add_u32 v3, {SUMB+PART}, v3')
        for ct in range(8):
            k(f'ds_read_b128 {V(192+8*ct,4)}, v3 offset:{512*ct}'); k(f'ds_read_b128 {V(196+8*ct,4)}, v3 offset:{512*ct+16}')
        for ct in range(8):
            b_ = 192 + 8 * ct
            k(f's_waitcnt lgkmcnt({min(15, 14 - 2*ct)})')
            for j in range(4): k(f'v_add_f32 v{b_+j}, v{b_+j}, v{b_+4+j}')
            k(f'v_add_f32 v{b_}, v{b_}, v{b_+1}'); k(f'v_add_f32 v{b_+2}, v{b_+2}, v{b_+3}'); k(f'v_add_f32 v{116+ct}, v{b_}, v{b_+2}')
    st(7)
    def rowsum(src, dst):
        for r in range(4):
            k(f'v_add_f32 v{dst+r}, v{src(0,r)}, v{src(1,r)}')
            for ct in range(2, 8): k(f'v_add_f32 v{dst+r}, v{dst+r}, v{src(ct,r)}')
        for m in ('quad_perm:[1,0,3,2]', 'quad_perm:[2,3,0,1]', 'row_half_mirror', 'row_mirror'):
            for r in range(4): k(f'v_add_f32_dpp v{dst+r}, v{dst+r}, v{dst+r} {m} row_mask:0xf bank_mask:0xf')
    k('s_cmp_eq_u32 s2, 255'); k('s_cbranch_scc1 KW_W2')
    rowsum(lambda ct, r: vDm + 4 * ct + r, 64)
    k('s_waitcnt lgkmcnt(0)'); k('s_barrier')
    st(2)
    colsum()
    k('v_add_f32 v6, v116, v117')
    for ct in range(2, 8): k(f'v_add_f32 v6, v6, v{116+ct}')
    allreduce16(k, 'v_add_f32', 6)
    for r in range(4): k(f'v_fma_f32 v{64+r}, -v6, s72, v{64+r}')
    k(f'v_bfe_u32 v3, v{vQ}, 2, 1'); k('v_lshlrev_b32 v3, 12, v3')
    k(f'v_lshrrev_b32 v4, 3, v{vQ}'); k('v_lshl_add_u32 v3, v4, 6, v3')
    k(f'v_and_b32 v4, 3, v{vQ}'); k('v_lshl_add_u32 v3, v4, 4, v3'); k(f'v_add_u32 v3, v3, v{vSt}')
    for ct in range(8):
        for r in range(4):
            d = vDm + 4 * ct + r
            k(f'v_add_f32 v4, v{64+r}, v{116+ct}'); k(f'v_fma_f32 v{d}, -v4, s72, v{d}'); k(f'v_mul_f32 v{d}, s73, v{d}')
        k(f'v_cvt_pk_bf16_f32 v{128+2*ct}, v{vDm+4*ct}, v{vDm+4*ct+1}'); k(f'v_cvt_pk_bf16_f32 v{129+2*ct}, v{vDm+4*ct+2}, v{vDm+4*ct+3}')
        k(f'ds_write_b64 v3, {V(128+2*ct,2)} offset:{8192*(ct//2)+128*(ct%2)}')
    k(f's_mov_b32 s{c.sTmp3}, {WFR}')
    k('s_branch KW_OUT')
    k.label('KW_W2')
    k('s_waitcnt lgkmcnt(0)'); k('s_barrier')
    for ct in range(8): k(f'ds_read_b32 v{64+ct}, v112 offset:{WP+64*ct}')
    k('s_waitcnt lgkmcnt(0)')
    colsum()
    k(f'v_lshlrev_b32 v3, 4, v{vQ}'); k(f'v_add_u32 v3, v3, v{vSt}')
    k('s_waitcnt lgkmcnt(0)')
    for ct in range(8):
        for r in range(4):
            d = vDm + 4 * ct + r
            k(f'v_fma_f32 v{d}, -v{116+ct}, s72, v{d}'); k(f'v_mul_f32 v{160+4*ct+r}, v{d}, v{64+ct}')
        k(f'v_cvt_pk_bf16_f32 v{128+2*ct}, v{vDm+4*ct}, v{vDm+4*ct+1}'); k(f'v_cvt_pk_bf16_f32 v{129+2*ct}, v{vDm+4*ct+2}, v{vDm+4*ct+3}')
        k(f'ds_write_b64 v3, {V(128+2*ct,2)} offset:{4096*ct}')
    rowsum(lambda ct, r: vDm + 4 * ct + r, 72)
    rowsum(lambda ct, r: 160 + 4 * ct + r, 76)
    for r in range(4): k(f'v_mul_f32 v{72+r}, s72, v{72+r}')
    k(f'v_lshlrev_b32 v3, 4, v{vG}'); k(f's_lshl_b32 s{c.sTmp2}, s{c.sWave}, 6'); k(f's_add_u32 s{c.sTmp2}, s{c.sTmp2}, {SUMB}'); k(f'v_add_u32 v3, s{c.sTmp2}, v3')
    k(f'ds_write_b128 v3, v[72:75] offset:{C0}'); k(f'ds_write_b128 v3, v[76:79] offset:{C1}')
    k(f's_mov_b32 s{c.sTmp3}, {WFR+32768}')
    k.label('KW_OUT')
    k('s_waitcnt lgkmcnt(0)'); k('s_barrier')
    k(f'v_add_u32 v3, s{c.sTmp}, v2'); k(f's_add_u32 s{c.sTmp3}, s{c.sTmp3}, s{c.sTmp}')
    for i in range(4): k(f'ds_read_b128 {V(64+4*i,4)}, v3 offset:{1024*i}')
    for i in range(4):
        k(f's_waitcnt lgkmcnt({3-i})')
        k(f'buffer_store_dwordx4 {V(64+4*i,4)}, v2, s[{c.sF}:{c.sF+3}], s{c.sTmp3} offen offset:{1024*i} sc1')
    k('s_cmp_eq_u32 s2, 255'); k('s_cbranch_scc0 KW_FIN')
    k(f's_cmp_ge_u32 s{c.sWave}, 4'); k('s_cbranch_scc1 KW_FIN')
    k(f'v_and_b32 v4, 3, v{vQ}')
    k(f'v_mov_b32 v3, {KK}'); k(f'v_mov_b32 v5, {WP}'); k(f'v_mov_b32 v6, {C0}'); k(f'v_mov_b32 v7, {C1}')
    for t, r in ((1, 5), (2, 6), (3, 7)):
        k(f'v_cmp_eq_u32 vcc, {t}, v4'); k(f'v_cndmask_b32 v3, v3, v{r}, vcc')
    k(f's_lshl_b32 s{c.sTmp2}, s{c.sWave}, 7'); k(f's_add_u32 s{c.sTmp2}, s{c.sTmp2}, {SUMB}')
    k(f'v_lshl_add_u32 v3, v{vG}, 5, v3'); k(f'v_add_u32 v3, s{c.sTmp2}, v3')
    k('ds_read_b128 v[80:83], v3'); k('ds_read_b128 v[84:87], v3 offset:16')
    k(f's_lshl_b32 s{c.sTmp2}, s{c.sWave}, 10'); k(f's_add_u32 s{c.sTmp2}, s{c.sTmp2}, {WFR+65536}')
    k('s_waitcnt lgkmcnt(0)')
    for j in range(4): k(f'v_cvt_pk_bf16_f32 v{88+j}, v{80+2*j}, v{81+2*j}')
    k(f'buffer_store_dwordx4 v[88:91], v2, s[{c.sF}:{c.sF+3}], s{c.sTmp2} offen sc1')
    k.label('KW_FIN')
    k(f's_sub_u32 s{c.sTmp}, s2, {WG_M}'); k(f's_lshl_b32 s{c.sTmp}, s{c.sTmp}, 6'); k(f's_add_u32 s{c.sTmp}, s{c.sTmp}, {WF}')
    k('s_waitcnt vmcnt(0)'); k('s_barrier')
    publish(c, c.sTmp, 0, 'KA_WP')
    st(3)
```

```python
from asmlib import *
from common import f2u, hx, srd, desc, allreduce16, allreduce8, xrow_reduce, Stamper, NAME, STMP
N = 10000
FS = 64
NONCE = 0
NPROD = 94
PBASE = 160
PEDGE = 1704
WG_M = 254
PF   = 4096
TF   = PF + 128 * FS
BF   = TF + 256 * FS
WF   = BF + 160 * FS
XC   = WF + 16 * FS
HOPF = XC + 256 * FS
HF   = HOPF + 256 * FS
FEND = HF + 7 * 256 * FS
WFR  = 176 << 10
WFR_BYTES = 69632
ELL  = 256 << 10
CELL = 2 << 20
CCAP = 32
CROW = CCAP * 4
CIMG = 157 * CROW
CSTR = CIMG
FREG = CELL + NPROD * CSTR
assert FEND <= WFR and WFR + WFR_BYTES <= ELL and ELL + 160 * 5120 <= CELL and FREG <= (4 << 20)
GOFF = 4 << 20
QS = 81920
GSZ = 32 * QS
NGBUF = 10
HOFF = GOFF + NGBUF * GSZ
HSZ = 2560000
CAP = 40
EPS = 1e-5
LOG2E = 1.4426950408889634
TOKB = 80000
TSTR = 2064
GSTR = 7 * TSTR
T7B = 240
LM = 151552
IMG = 131072
LDS_BYTES = LM + 768
assert LDS_BYTES >= TOKB + 5 * GSTR
SCB = 2304
SPIN = 1 << 20
```

```python
from km_common import *

def merge(k, E, M):
    M = list(M)
    for e in E:
        if isinstance(e, tuple):
            for _ in range(e[1]):
                if M: k(M.pop(0))
        else: k(e)
    for m in M: k(m)

def transformer(c):
    k, st = c.k, c.st
    sWave, sF, sTmp = c.sWave, c.sF, c.sTmp
    sO = c.sT
    sPair, sSC, sT, sBuf, sOutOff, sC128, sEps, sL2e, sVal = 64, 65, 66, 67, 68, 69, 70, 71, 72
    vW = 128
    vQ, vG, vTok, vMask = 8, 9, 10, 11
    HB = 1536
    BAR = 's_nop 0' if int(c.opts.get('nobar', 0)) else 's_barrier'
    def rst(j):
        if st.on:
            k(f's_lshl_b32 s93, s{sT}, 1'); k(f's_add_u32 m0, s93, {53+j}' if False else f's_add_u32 m0, s93, {50+j}'); k('s_nop 3')
    k(f's_lshl_b32 s{sT}, s{sWave}, 3'); k(f's_lshl_b32 s{sBuf}, s{sWave}, 13'); k(f's_add_u32 s{sBuf}, s{sBuf}, {WFR}')
    for i in range(8):
        k(f's_mul_i32 s{sTmp}, s{sT}, 43'); k(f's_lshr_b32 s{sTmp}, s{sTmp}, 9'); k(f's_min_u32 s{sTmp}, s{sTmp}, 4')
        k(f's_mul_i32 s{sTmp}, s{sTmp}, {GSTR - 12*1024}'); k(f's_lshl_b32 s{sSC}, s{sT}, 10')
        k(f's_add_u32 s{sTmp}, s{sTmp}, s{sSC}'); k(f's_add_u32 m0, s{sTmp}, {SCB}')
        k(f's_add_u32 s{sT}, s{sT}, 1')
        k(f'buffer_load_dwordx4 v2, s[{sF}:{sF+3}], s{sBuf} offen sc1 lds')
        if i < 7: k(f's_add_u32 s{sBuf}, s{sBuf}, 1024')
    srd(k, sO, 82, 0, 2560000)
    k(f's_and_b32 s{sPair}, s{sWave}, 3')
    k(f's_mul_i32 s{sSC}, s{sPair}, {GSTR}'); k(f's_add_u32 s{sSC}, s{sSC}, {SCB}')
    k(f's_mov_b32 s{sC128}, {hx(f2u(1.0/128))}'); k(f's_mov_b32 s{sEps}, {hx(f2u(EPS))}'); k(f's_mov_b32 s{sL2e}, {hx(f2u(LOG2E))}')
    k(f's_mul_i32 s{sOutOff}, s2, {40*256}')
    k(f'v_and_b32 v{vQ}, 15, v1'); k(f'v_lshrrev_b32 v{vG}, 4, v1')
    def tokbase(dst, kreg):
        k(f'v_mul_u32_u24 v{dst}, {TSTR}, v{kreg}'); k(f'v_add_u32 v{dst}, {TOKB}, v{dst}')
        k(f'v_mov_b32 v7, {T7B}'); k(f'v_cmp_eq_u32 vcc, 7, v{kreg}'); k(f'v_cndmask_b32 v{dst}, v{dst}, v7, vcc')
        k(f's_lshl_b32 s{sTmp}, s{sPair}, 4'); k(f'v_add_u32 v{dst}, s{sTmp}, v{dst}')
    k(f'v_and_b32 v3, 7, v{vQ}'); tokbase(vTok, 3)
    k(f'v_lshl_add_u32 v{vTok}, v{vG}, 7, v{vTok}')
    k(f'v_lshrrev_b32 v4, 3, v{vQ}'); k(f'v_lshl_add_u32 v{vTok}, v4, 3, v{vTok}')
    k(f'v_lshrrev_b32 v5, 1, v{vG}')
    k(f'v_cmp_eq_u32 s[{sVal}:{sVal+1}], v4, v5')
    k(f'v_cndmask_b32 v{vMask}, 0, 1.0, s[{sVal}:{sVal+1}]')
    k(f's_mov_b32 s{sT}, 0'); k(f's_mov_b32 s{sBuf}, 0')
    vTK = 16
    def tk(cc, b=vTK): return V(b + 4 * cc, 4)
    def read_tok(b=vTK):
        return [f'ds_read_b64 v[{b+4*cc+2*h}:{b+4*cc+2*h+1}], v{vTok} offset:{(8*cc+h)*64}' for cc in range(4) for h in range(2)]
    k(f's_cmp_ge_u32 s{sWave}, 4'); k('s_cbranch_scc1 KZ')

    def waddr(n): return (n // 12) * GSTR + SCB + (n % 12) * 1024 if n < 48 else 4 * GSTR + SCB + (n - 48) * 1024
    def load_w(base):
        k(f'v_add_u32 v3, 32768, v2')
        for i in range(32):
            a_ = waddr(base + i)
            k(f'ds_read_b128 {V(vW+4*i,4)}, v{2 if a_ < 65536 else 3} offset:{a_ if a_ < 65536 else a_ - 32768}')
    vK, vU, vAcc = 32, 48, 64
    vGm, vX, vD1, vS, vRk, vC, vP, vDx, vAx, vPb, vRq, vD, vM, vM2 = 76, 80, 84, 88, 92, 96, 100, 104, 108, 110, 112, 113, 114, 115
    vGw, vGr, vRw, vRr, vHw2, vH1, vH2 = 12, 13, 14, 15, 116, 117, 118
    k(f'v_add_u32 v{vGw}, s{sSC}, v2')
    k(f'v_lshrrev_b32 v3, 2, v{vQ}'); k(f'v_lshl_add_u32 v3, v3, 4, v{vQ}'); k('v_lshlrev_b32 v3, 4, v3')
    k(f'v_and_b32 v4, 3, v{vQ}'); k('v_lshl_add_u32 v3, v4, 2, v3'); k(f'v_add_u32 v{vGr}, s{sSC}, v3')
    k(f'v_lshlrev_b32 v3, 2, v{vQ}'); k(f'v_add_u32 v{vRw}, s{sSC}, v3')
    k(f'v_lshlrev_b32 v3, 4, v{vG}'); k(f'v_add_u32 v{vRr}, s{sSC}, v3')
    k(f'v_lshlrev_b32 v3, 3, v1'); k(f'v_add_u32 v{vHw2}, s{sSC}, v3')
    k(f's_mov_b32 s{sTmp}, {WFR + 65536}')
    for i in range(4): k(f'buffer_load_dwordx4 {V(vK+4*i,4)}, v2, s[{sF}:{sF+3}], s{sTmp} offen offset:{1024*i} sc1')
    k('s_waitcnt vmcnt(4)'); st(52); k('s_barrier')
    load_w(0)
    k('s_waitcnt vmcnt(0) lgkmcnt(0)'); st(53); k('s_barrier'); st(54)
    def mm(d, a, b, first): return f'v_mfma_f32_16x16x32_bf16 {V(d,4)}, {a}, {b}, {"0" if first else V(d,4)}'
    def utile(T): return [mm(vAcc + 4 * (T % 3), V(vW + 16 * T + 4 * cc, 4), tk(cc), cc == 0) for cc in range(4)]
    def ucvt(T):
        a = vAcc + 4 * (T % 3); d = vU + 4 * (T // 2) + 2 * (T % 2)
        return [f'v_cvt_pk_bf16_f32 v{d}, v{a}, v{a+1}', f'v_cvt_pk_bf16_f32 v{d+1}, v{a+2}, v{a+3}']
    def head():
        return ([mm(vGm, tk(cc), tk(cc), cc == 0) for cc in range(4)] + [mm(vX, tk(cc), V(vK + 4 * cc, 4), cc == 0) for cc in range(4)]
                + utile(0) + utile(1) + utile(2) + ucvt(0) + utile(3) + ucvt(1))
    def tail():
        L = [f'ds_write_b128 v{vGw}, {V(vGm,4)}', f'ds_read_b32 v{vD}, v{vGr}']
        L += [mm(vD1, V(vK + 4 * cc, 4), tk(cc), cc == 0) for cc in range(4)]
        L += ucvt(2) + utile(4) + ucvt(3)
        L += [f'v_cvt_pk_bf16_f32 v{vAx}, v{vX}, v{vX+1}', f'v_cvt_pk_bf16_f32 v{vAx+1}, v{vX+2}, v{vX+3}']
        u5 = utile(5)
        L += ['s_waitcnt lgkmcnt(0)', f'v_mul_f32 v{vD}, s{sC128}, v{vD}', u5[0], f'v_fma_f32 v{vD}, -v{vD1}, v{vD1}, v{vD}', u5[1],
              f'v_max_f32 v{vD}, 0, v{vD}', u5[2], f'v_add_f32 v{vD}, s{sEps}, v{vD}', u5[3], f'v_rsq_f32 v{vRq}, v{vD}']
        L += [f'v_add_u32 v{vH1}, s{sBuf}, v{vGw}', f'ds_write_b32 v{vRw}, v{vRq} offset:1024', f'ds_read_b128 {V(vRk,4)}, v{vRr} offset:1024']
        L += ucvt(4) + utile(6) + [f'v_add_u32 v{vH2}, s{sBuf}, v{vHw2}'] + ucvt(5) + utile(7)
        L += ['s_waitcnt lgkmcnt(0)'] + [f'v_mul_f32 v{vC+r}, v{vRq}, v{vRk+r}' for r in range(4)]
        L += ucvt(6) + ucvt(7)
        L += [mm(vS, tk(cc), V(vU + 4 * cc, 4), cc == 0) for cc in range(4)]
        return L
    def chain(more):
        E = []
        if more: E += read_tok() + [f'v_add_u32 v{vTok}, {GSTR}, v{vTok}', 's_waitcnt lgkmcnt(0)', ('fill', 2)]
        E += [f'v_mul_f32 v{vS+r}, v{vS+r}, v{vC+r}' for r in range(4)]
        E += [f'v_max3_f32 v{vM}, v{vS}, v{vS+1}, v{vS+2}', f'v_max_f32 v{vM}, v{vM}, v{vS+3}', f'v_mov_b32 v{vM2}, v{vM}', ('fill', 2),
              f'v_permlane16_swap_b32 v{vM}, v{vM2}', f'v_max_f32 v{vM}, v{vM}, v{vM2}', ('fill', 1)]
        E += [f'v_sub_f32 v{vS+r}, v{vS+r}, v{vM}' for r in range(4)] + [('fill', 2)]
        for r in range(4): E += [f'v_exp_f32 v{vS+r}, v{vS+r}', ('fill', 1)]
        E += [f'v_add_f32 v{vM}, v{vS}, v{vS+1}', f'v_add_f32 v{vM2}, v{vS+2}, v{vS+3}', ('fill', 1), f'v_add_f32 v{vM}, v{vM}, v{vM2}',
              f'v_mov_b32 v{vM2}, v{vM}', f'v_mul_f32 v{vS}, v{vS}, v{vRk}', f'v_mul_f32 v{vS+1}, v{vS+1}, v{vRk+1}', ('fill', 1),
              f'v_permlane16_swap_b32 v{vM}, v{vM2}', f'v_mul_f32 v{vS+2}, v{vS+2}, v{vRk+2}', f'v_mul_f32 v{vS+3}, v{vS+3}, v{vRk+3}', ('fill', 1),
              f'v_add_f32 v{vM}, v{vM}, v{vM2}', f'v_rcp_f32 v{vM}, v{vM}', ('fill', 1), f'v_mul_f32 v{vM}, v{vM}, v{vMask}']
        E += [f'v_mul_f32 v{vP+r}, v{vS+r}, v{vM}' for r in range(4)] + [('fill', 1)]
        E += [f'v_cvt_pk_bf16_f32 v{vPb}, v{vP}, v{vP+1}', f'v_cvt_pk_bf16_f32 v{vPb+1}, v{vP+2}, v{vP+3}',
              f'ds_write_b128 v{vH1}, {V(vP,4)} offset:2048', ('fill', 1),
              f'v_mfma_f32_16x16x16_bf16 {V(vDx,4)}, {V(vAx,2)}, {V(vPb,2)}, 0', ('fill', 8),
              f'v_add_f32 v{vD1}, v{vD1}, v{vDx+2}', f'v_add_f32 v{vD1+1}, v{vD1+1}, v{vDx+3}', f'v_mul_f32 v{vD1+1}, s{sL2e}, v{vD1+1}',
              f'ds_write_b64 v{vH2}, {V(vD1,2)} offset:{2048+1024}', f's_xor_b32 s{sBuf}, s{sBuf}, {HB}',
              's_waitcnt lgkmcnt(0)', BAR]
        return E
    if int(c.opts.get('uskip', 0)):
        for _ in range(5): k('s_barrier')
        k('s_branch K_FIN')
    for x in read_tok(): k(x)
    k(f'v_add_u32 v{vTok}, {GSTR}, v{vTok}'); k('s_waitcnt lgkmcnt(0)')
    for x in head(): k(x)
    k.label('KU_L')
    for x in tail(): k(x)
    k(f's_add_u32 s{sT}, s{sT}, 1'); k(f's_cmp_eq_u32 s{sT}, 5'); k('s_cbranch_scc1 KU_E')
    merge(k, chain(True), head())
    k('s_branch KU_L')
    k.label('KU_E')
    merge(k, chain(False), [])
    st(59)
    k('s_branch K_FIN')

    k.label('KZ')
    vTr, vBw, vAw, vBr, vOut, vHr, vHr2, vX32 = 12, 13, 14, 15, 32, 33, 34, 35
    vA = 36
    vB = 84
    vAcc = 92
    vDd = 104
    vPf, vMt, vZ0, vZ1 = 120, 124, 3, 4
    vSq, vDo = 120 - 0, 6
    vSq = 5
    sq = [5, 6, 7, 90]
    vDo = 0
    ZR, DUMP = 5120, 6144
    if int(c.opts.get('zprio', 1)): k('s_setprio 1')
    k(f'v_and_b32 v3, 1, v{vG}'); k('v_lshlrev_b32 v3, 2, v3'); k(f'v_lshrrev_b32 v4, 2, v{vQ}'); k('v_add_u32 v3, v3, v4')
    tokbase(vTr, 3)
    k(f'v_and_b32 v4, 3, v{vQ}'); k(f'v_lshl_add_u32 v{vTr}, v4, 6, v{vTr}'); k(f'v_lshl_add_u32 v{vTr}, v5, 3, v{vTr}')
    k(f'v_lshlrev_b32 v3, 2, v{vG}'); k(f'v_sub_u32 v3, v{vQ}, v3')
    k('v_mov_b32 v4, 0x3f80'); k('v_mov_b32 v6, 0x3f800000')
    for i in range(2):
        k(f'v_cmp_eq_u32 vcc, {2*i}, v3'); k(f'v_cndmask_b32 v{vB+2+i}, 0, v4, vcc')
        k(f'v_cmp_eq_u32 vcc, {2*i+1}, v3'); k(f'v_cndmask_b32 v{vB+2+i}, v{vB+2+i}, v6, vcc')
    k(f'v_lshlrev_b32 v3, 4, v{vG}')
    k(f'v_add_u32 v4, {ZR+448}, v3'); k(f'v_mov_b32 v6, {DUMP}')
    k(f'v_cndmask_b32 v{vBw}, v6, v4, s[{sVal}:{sVal+1}]'); k(f'v_add_u32 v{vBw}, s{sSC}, v{vBw}')
    k(f'v_and_b32 v4, 7, v{vQ}'); k('v_sub_u32 v4, 7, v4'); k('v_lshlrev_b32 v4, 6, v4')
    k('v_mov_b32 v6, 512'); k(f'v_cndmask_b32 v4, v6, v4, s[{sVal}:{sVal+1}]')
    k(f'v_add3_u32 v{vBr}, v4, v3, s{sSC}'); k(f'v_add_u32 v{vBr}, {ZR}, v{vBr}')
    k(f'v_lshrrev_b32 v3, 2, v{vQ}'); k('v_lshlrev_b32 v3, 4, v3')
    k(f'v_and_b32 v4, 3, v{vQ}'); k('v_lshl_add_u32 v3, v4, 1, v3')
    k(f'v_add_u32 v3, {ZR+448}, v3'); k(f'v_add_u32 v{vAw}, s{sSC}, v3')
    k(f'v_lshrrev_b32 v3, 3, v{vQ}'); k(f'v_lshlrev_b32 v{vOut}, 8, v3')
    k(f'v_and_b32 v4, 7, v{vQ}'); k(f'v_lshl_add_u32 v{vOut}, v4, 5, v{vOut}'); k(f'v_lshl_add_u32 v{vOut}, v{vG}, 3, v{vOut}')
    k(f's_lshl_b32 s{sTmp}, s{sPair}, 9'); k(f'v_add_u32 v{vOut}, s{sTmp}, v{vOut}')
    k(f'v_add_u32 v{vHr}, s{sSC}, v2')
    k(f'v_lshlrev_b32 v3, 3, v1'); k(f'v_add_u32 v{vHr2}, s{sSC}, v3')
    for i in range(4): k(f'v_mov_b32 v{vAcc+i}, 0')
    c.tail_early()
    k('s_barrier')
    load_w(32)
    c.tail_tokens()
    k('s_waitcnt vmcnt(0) lgkmcnt(0)'); st(53); k('s_barrier'); st(54)
    k(f'ds_write_b128 v{vHr}, {V(vAcc,4)} offset:{ZR}')
    if int(c.opts.get('zskip', 0)):
        for i in range(5): k('s_barrier'); st(55 + i)
        k('s_branch K_FIN')
    def zwork(par):
        L = []
        def tile(T):
            a = vAcc + 4 * (T % 3)
            for cc in range(4):
                L.append(f'v_mfma_f32_16x16x32_bf16 {V(a,4)}, {tk(cc)}, {V(vW+16*T+4*cc,4)}, {"0" if cc == 0 else V(a,4)}')
        def cvt(T):
            a = vAcc + 4 * (T % 3); d = vA + 6 * T + 4 * par
            L.append(f'v_cvt_pk_bf16_f32 v{d}, v{a}, v{a+1}'); L.append(f'v_cvt_pk_bf16_f32 v{d+1}, v{a+2}, v{a+3}')
        tile(0); tile(1)
        for T in range(2, 8): tile(T); cvt(T - 2)
        cvt(6); cvt(7)
        return L
    def tr_reads(): return [f'ds_read_b64_tr_b16 v[{vA+6*T+2}:{vA+6*T+3}], v{vTr} offset:{256*T}' for T in range(8)]
    F = [int(x) for x in c.opts.get('zf', '3,0,1,2,2,1,2,2,2,1,2,6,0').split(',')]
    for x in read_tok(): k(x)
    for x in tr_reads(): k(x)
    k(f'v_add_u32 v{vTok}, {GSTR}, v{vTok}'); k(f'v_add_u32 v{vTr}, {GSTR}, v{vTr}')
    k('s_waitcnt lgkmcnt(8)')
    for x in zwork(0): k(x)
    def body(par, withz):
        Aop = lambda T: V(vA + 6 * T + 2 * par, 4)
        Bop = V(vB + 2 * par, 4); Pd = vB + 4 * par
        ob, oa = (0, 8) if par == 0 else (8, 0)
        hb = HB * par
        E = ['s_waitcnt lgkmcnt(0)', BAR,
             f'ds_read_b128 {V(vPf,4)}, v{vHr} offset:{2048+hb}', f'ds_read_b64 {V(vMt,2)}, v{vHr2} offset:{2048+1024+hb}']
        if withz: E += read_tok() + [f'v_add_u32 v{vTok}, {GSTR}, v{vTok}']
        E += [f's_waitcnt lgkmcnt({9 if withz else 1})',
              f'v_cvt_pk_bf16_f32 v{Pd}, v{vPf}, v{vPf+1}', f'v_cvt_pk_bf16_f32 v{Pd+1}, v{vPf+2}, v{vPf+3}']
        def pv(T): return f'v_mfma_f32_16x16x32_bf16 {V(vDd+4*(T%4),4)}, {Aop(T)}, {Bop}, 0'
        def sqs(T):
            o = []
            for r in range(4):
                d = vDd + 4 * (T % 4) + r
                o.append(f'v_mul_f32 v{sq[r]}, v{d}, v{d}' if T == 0 else f'v_fmac_f32 v{sq[r]}, v{d}, v{d}')
            return o
        E += [pv(0), pv(1), pv(2), pv(3), 's_waitcnt lgkmcnt(0)', ('fill', F[0])]
        for T in range(4):
            E += sqs(T) + [pv(T + 4)] + [('fill', F[1])]
        for T in range(4, 8):
            E += sqs(T) + [('fill', F[2])]
        E += [f'v_add_f32 v{sq[0]}, v{sq[0]}, v{sq[1]}', f'v_add_f32 v{sq[2]}, v{sq[2]}, v{sq[3]}', f'v_add_f32 v{sq[0]}, v{sq[0]}, v{sq[2]}',
              f'v_mov_b32 v{sq[1]}, v{sq[0]}', ('fill', F[3]), f'v_permlane16_swap_b32 v{sq[0]}, v{sq[1]}', f'v_add_f32 v{sq[0]}, v{sq[0]}, v{sq[1]}',
              f'v_mov_b32 v{sq[1]}, v{sq[0]}', ('fill', F[4]), f'v_permlane32_swap_b32 v{sq[0]}, v{sq[1]}', f'v_add_f32 v{sq[0]}, v{sq[0]}, v{sq[1]}',
              f'v_mul_f32 v{sq[0]}, s{sC128}, v{sq[0]}', f'v_fma_f32 v{sq[0]}, -v{vMt}, v{vMt}, v{sq[0]}', ('fill', F[5]),
              f'v_max_f32 v{sq[0]}, 0, v{sq[0]}', f'v_add_f32 v{sq[0]}, s{sEps}, v{sq[0]}', f'v_rsq_f32 v{sq[0]}, v{sq[0]}', ('fill', F[5]),
              f'v_mul_f32 v{vZ0}, v{vMt+1}, v{sq[0]}', ('fill', F[6])]
        dp = ('quad_perm:[1,0,3,2]', 'quad_perm:[2,3,0,1]', 'row_half_mirror')
        for i, m in enumerate(dp):
            s_ = vZ0 if i == 0 else vZ1
            E += [f'v_max_f32_dpp v{vZ1}, v{s_}, v{s_} {m} row_mask:0xf bank_mask:0xf', ('fill', F[7] if i < 2 else 0)]
        E += [f'v_sub_f32 v{vZ0}, v{vZ0}, v{vZ1}', f'v_exp_f32 v{vZ0}, v{vZ0}', ('fill', F[8])]
        for i, m in enumerate(dp):
            s_ = vZ0 if i == 0 else vZ1
            E += [f'v_add_f32_dpp v{vZ1}, v{s_}, v{s_} {m} row_mask:0xf bank_mask:0xf', ('fill', F[7] if i < 2 else 0)]
        E += [f'v_rcp_f32 v{vZ1}, v{vZ1}', ('fill', F[9]), f'v_mul_f32 v{vZ0}, v{vZ0}, v{vZ1}']
        E += [f'v_mul_f32 v{vPf+r}, v{vPf+r}, v{vZ0}' for r in range(4)] + [('fill', F[10])]
        E += [f'v_cvt_pk_bf16_f32 v{vZ1}, v{vZ0}, v{vZ0}', f'ds_write_b16 v{vAw}, v{vZ1} offset:{oa}']
        for m in dp:
            E += [f'v_add_f32_dpp v{vPf+r}, v{vPf+r}, v{vPf+r} {m} row_mask:0xf bank_mask:0xf' for r in range(4)] + [('fill', F[10])]
        E += [f'v_cvt_pk_bf16_f32 v{vMt}, v{vPf}, v{vPf+1}', f'v_cvt_pk_bf16_f32 v{vMt+1}, v{vPf+2}, v{vPf+3}',
              f'ds_write_b64 v{vBw}, {V(vMt,2)} offset:{ob}']
        E += [f'ds_read_b128 {V(vDd+4*T,4)}, v{vBr} offset:{64*T}' for T in range(4)]
        E += [('fill', F[11])]
        for T in range(8):
            E += [f's_waitcnt lgkmcnt({min(3, 7 - T)})',
                  f'v_mfma_f32_16x16x32_bf16 {V(vPf,4)}, {Aop(T)}, {V(vDd+4*(T%4),4)}, {"0" if T == 0 else V(vPf,4)}']
            if T < 4: E += [f'ds_read_b128 {V(vDd+4*T,4)}, v{vBr} offset:{64*(T+4)}']
            E += [('fill', F[12])]
        if withz: E += tr_reads() + [f'v_add_u32 v{vTr}, {GSTR}, v{vTr}']
        E += [('fill', 99)]
        E += [f'v_cvt_pk_bf16_f32 v{vMt}, v{vPf}, v{vPf+1}', f'v_cvt_pk_bf16_f32 v{vMt+1}, v{vPf+2}, v{vPf+3}',
              f'buffer_store_dwordx2 {V(vMt,2)}, v{vOut}, s[{sO}:{sO+3}], s{sOutOff} offen', f's_add_u32 s{sOutOff}, s{sOutOff}, 2048']
        merge(k, E, zwork(1 - par) if withz else [])
    st.clk(50)
    k.label('KZ_L')
    body(0, True)
    if st.on: k(f's_add_u32 m0, s{sT}, 55'); k('s_nop 3'); st('m0')
    body(1, True)
    if st.on: k(f's_add_u32 m0, s{sT}, 56'); k('s_nop 3'); st('m0')
    k(f's_add_u32 s{sT}, s{sT}, 2'); k(f's_cmp_lt_u32 s{sT}, 4'); k('s_cbranch_scc1 KZ_L')
    st.clk(51); st(60)
    body(0, False)
    st(59)
```

```python
import sys
from km_common import *
import km_a
from km_t import transformer

class Ctx: pass

def gen(opts):
    k = Kern(); c = Ctx(); c.k = k; c.opts = opts
    S0 = int(opts.get('S', 28))
    force_global = int(opts.get('force_global', 0)); force_slow = int(opts.get('force_slow', 0))
    st = c.st = Stamper(k, int(opts.get('stamp', 0)), 127, 88, 0)
    c.sWS = sWS = 4
    c.sF = sF = 8; sGR = 12; c.sGW = sGW = 16; c.sH = sH = 20; c.sX = sX = 24; c.sT = sT = 28; c.sT2 = sT2 = 32
    (c.sWave, sQuad, sPart, sMode, sDead, sHop) = (36, 37, 38, 39, 40, 41); sWave = c.sWave
    sSt = 42
    sSlow, c.sTag0, c.sTag1, sXcc, c.sTmp, c.sTmp2, c.sTmp3, c.sCnt = 45, 46, 47, 48, 49, 50, 51, 52
    sTag0, sTag1, sTmp, sTmp2, sTmp3, sCnt = c.sTag0, c.sTag1, c.sTmp, c.sTmp2, c.sTmp3, c.sCnt
    sFillM, sSlotW, sSlotR, sQoff, sTk = 53, 54, 55, 57, 58
    sHo = 76; sChk = 79; sPQ = 56; sXS = 59
    sEx, sM2, sMk = 60, 62, 64
    sNon, sSI, sHFR, sTokG, sTokL, sTK, sHFW = 92, 93, 94, 95, 96, 97, 98
    c.sNon = sNon
    vD, vD2, vGA, vHA, vSel, vAcc, vHp, vGp, vAd, vBuf, vFl, vHF, vSi, vI = 8, 11, 14, 15, 16, 20, 32, 38, 40, 44, 60, 62, 63, 64
    vW = 128; vXA = 128; vG3 = 216
    LST = TOKB

    def early_setup():
        k(f's_mul_i32 s{sCnt}, s{sPart}, 1280'); k(f'v_add_u32 v3, s{sCnt}, v0')
        k(f'v_lshlrev_b32 v{vGA}, 3, v3')
        k(f'v_lshrrev_b32 v{vHA}, 3, v3'); k(f'v_lshlrev_b32 v{vHA}, 11, v{vHA}')
        k('v_and_b32 v4, 7, v3'); k(f'v_lshl_add_u32 v{vHA}, v4, 3, v{vHA}')
        k(f's_lshl_b32 s{sCnt}, s{sQuad}, 6'); k(f'v_add_u32 v{vHA}, s{sCnt}, v{vHA}')
        k('v_bfe_u32 v3, v1, 3, 1'); k('v_bfe_u32 v4, v1, 4, 1'); k('v_bfe_u32 v5, v1, 2, 1')
        k('v_mov_b32 v6, 0x3f80'); k('v_cmp_eq_u32 vcc, v3, v4'); k('v_cndmask_b32 v6, 0, v6, vcc')
        k('v_cmp_eq_u32 vcc, 0, v5'); k(f'v_cndmask_b32 v{vSel}, 0, v6, vcc'); k(f'v_cndmask_b32 v{vSel+2}, v6, 0, vcc')
        k(f'v_mov_b32 v{vSel+1}, v{vSel}'); k(f'v_mov_b32 v{vSel+3}, v{vSel+2}')
        k('v_and_b32 v3, 3, v1'); k('v_add_u32 v4, 1, v3'); k('v_and_b32 v4, 3, v4'); k('v_lshl_or_b32 v3, v4, 2, v3')
        k(f'v_mul_u32_u24 v{vSi}, 0x1111, v3')
        k(f'v_lshlrev_b32 v{vHF}, 6, v1')
        k('v_lshlrev_b32 v3, 4, v0'); k(f'v_add_u32 v3, {IMG}, v3')
        for i in range(4): k(f'v_mov_b32 v{56+i}, -1')
        k(f'ds_write_b128 v3, v[56:59]'); k(f'ds_write_b128 v3, v[56:59] offset:8192')
        k(f'v_lshlrev_b32 v3, 2, v0'); k(f'v_add_u32 v3, {LM}, v3')
        k(f'v_mov_b32 v4, {hx((0xffffffff << S0) & 0xffffffff)}'); k('v_cmp_gt_u32 vcc, 64, v0'); k('v_cndmask_b32 v4, 0, v4, vcc')
        k('ds_write_b32 v3, v4')
    def make_tag():
        k('s_waitcnt lgkmcnt(0)')
        k(f's_mul_i32 s{sTag0}, s{sNon}, 0x9e3779b1'); k(f's_add_u32 s{sTag0}, s{sTag0}, 0x85ebca6b')
        k(f's_mul_i32 s{sTag1}, s{sTag0}, 0x2c1b3c6d'); k(f's_xor_b32 s{sTag1}, s{sTag1}, 0x297a2d39')
        k(f's_mov_b32 s{sNon}, s{sTag0}')
        k(f's_and_b32 s{sTag0}, s{sTag0}, 0xffffff00')
    c.early_setup = early_setup; c.make_tag = make_tag
    vSx, vSd, vT0x = 44, 52, 128
    NSL = 8
    def slice_loads():
        uid[0] += 1; t = f'KSL{uid[0]}'
        k(f's_bfe_u32 s{sEx}, s{sXS}, 0x50006'); k(f's_mul_i32 s{sEx}, s{sEx}, 320')
        k(f's_lshl_b32 s{sEx+1}, s{sWave}, 5'); k(f's_add_u32 s{sEx}, s{sEx}, s{sEx+1}')
        k('v_and_b32 v3, 31, v1'); k(f'v_add_u32 v3, s{sEx}, v3')
        k('v_lshrrev_b32 v4, 5, v1'); k('v_lshlrev_b32 v5, 8, v3'); k('v_lshl_add_u32 v5, v4, 4, v5')
        k(f's_and_b32 s{sEx}, s2, 7'); k(f's_lshl_b32 s{sEx}, s{sEx}, 5'); k(f's_add_u32 s{sEx+1}, s{sEx}, 65536')
        k('v_lshlrev_b32 v6, 1, v3')
        k(f'buffer_load_dwordx4 {V(vSx,4)}, v5, s[{sX}:{sX+3}], s{sEx} offen')
        k(f'buffer_load_ushort v{vSd}, v6, s[{sT}:{sT+3}], 0 offen')
        k(f's_cmp_ge_u32 s{sWave}, 2'); k(f's_cbranch_scc1 {t}')
        k(f'buffer_load_dwordx4 {V(vSx+4,4)}, v5, s[{sX}:{sX+3}], s{sEx+1} offen')
        k(f'buffer_load_ushort v{vSd+1}, v6, s[{sT}:{sT+3}], 0 offen offset:512')
        k.label(t)
        k(f'v_mul_u32_u24 v{vSd+2}, {2*QS}, v4'); k(f'v_lshl_add_u32 v{vSd+2}, v3, 3, v{vSd+2}')
    def tok0_loads():
        uid[0] += 1; t = f'KTL{uid[0]}'
        k(f's_cmp_lt_u32 s{sWave}, 4'); k(f's_cbranch_scc1 {t}')
        k('v_and_b32 v3, 7, v1'); k('v_lshlrev_b32 v3, 8, v3'); k('v_lshrrev_b32 v4, 3, v1'); k('v_lshl_add_u32 v3, v4, 4, v3')
        k(f's_mul_i32 s{sEx}, s2, 5'); k(f's_add_u32 s{sEx}, s{sEx}, s{sWave}'); k(f's_sub_u32 s{sEx}, s{sEx}, 4'); k(f's_lshl_b32 s{sEx}, s{sEx}, 11')
        k(f's_add_u32 s{sEx+1}, s{sEx}, 8192')
        for j in range(4):
            if j == 2: k(f's_cmp_lg_u32 s{sWave}, 4'); k(f's_cbranch_scc1 {t}')
            k(f'buffer_load_dwordx4 {V(vT0x+4*j,4)}, v3, s[{sX}:{sX+3}], s{sEx+j//2} offen offset:{128*(j%2)}')
        k.label(t)
    def xcc_publish():
        uid[0] += 1
        k(f's_add_u32 s{sEx}, s{sXS}, {XC}')
        km_a.publish(c, sEx, f's{sXcc}', f'K_XP{uid[0]}', wave=7)
    def slice_finish(t, has_slice=True):
        BC0 = TOKB + 20480
        k(f'v_mov_b32 v6, {BC0}')
        k(f's_cmp_lg_u32 s{sWave}, 3'); k(f's_cbranch_scc1 {t}_XW')
        k(f's_and_b32 s{sEx}, s{sXS}, {hx(~2047)}'); k(f's_add_u32 s{sEx}, s{sEx}, {XC}')
        k(f'v_mov_b32 v{vGp}, s{sXcc}')
        poll(t + '_XP', f's{sEx}', 0, 'lo32', vdst=vGp, sleep=SL)
        k(f'v_cmp_ne_u32 vcc, s{sXcc}, v{vGp}'); k('s_cmp_eq_u64 vcc, 0'); k(f's_cselect_b32 s{sMode}, {1 - force_global}, 0')
        k(f'v_mov_b32 v7, s{sMode}'); k('ds_write_b32 v6, v7'); k('s_waitcnt lgkmcnt(0)')
        k.label(f'{t}_XW')
        if not has_slice:
            k('s_barrier')
            k('ds_read_b32 v7, v6'); k('s_waitcnt lgkmcnt(0)'); k(f'v_readfirstlane_b32 s{sMode}, v7')
            return
        k('s_waitcnt vmcnt(0)')
        for sl in range(2):
            k(f'v_lshlrev_b32 v{vSd+sl}, 16, v{vSd+sl}')
            for j in range(4):
                r = vSx + 4 * sl + j
                k(f'v_lshlrev_b32 v4, 16, v{r}'); k(f'v_and_b32 v5, 0xffff0000, v{r}')
                k(f'v_mul_f32 v4, v4, v{vSd+sl}'); k(f'v_mul_f32 v5, v5, v{vSd+sl}')
                k(f'v_cvt_pk_bf16_f32 v{r}, v4, v5')
        k(f's_and_b32 s{sEx}, s2, 7'); k(f's_mul_i32 s{sEx}, s{sEx}, {4*QS}'); k(f's_add_u32 s{sEx}, s{sEx}, {GOFF}')
        srd(k, sGW, sWS, f's{sEx}', 4 * QS)
        k(f's_mov_b32 s{sEx}, {QS}')
        k('s_barrier')
        k('ds_read_b32 v7, v6'); k('s_waitcnt lgkmcnt(0)'); k(f'v_readfirstlane_b32 s{sMode}, v7')
        def stores(fl):
            k(f'buffer_store_dwordx2 {V(vSx,2)}, v{vSd+2}, s[{sGW}:{sGW+3}], 0 offen{fl}')
            k(f'buffer_store_dwordx2 {V(vSx+2,2)}, v{vSd+2}, s[{sGW}:{sGW+3}], s{sEx} offen{fl}')
            tt = t + ('_SG' if fl else '_SL')
            k(f's_cmp_ge_u32 s{sWave}, 2'); k(f's_cbranch_scc1 {tt}')
            k(f'buffer_store_dwordx2 {V(vSx+4,2)}, v{vSd+2}, s[{sGW}:{sGW+3}], 0 offen offset:2048{fl}')
            k(f'buffer_store_dwordx2 {V(vSx+6,2)}, v{vSd+2}, s[{sGW}:{sGW+3}], s{sEx} offen offset:2048{fl}')
            k.label(tt)
        dual(stores, t + '_ST')
        k(f's_add_u32 s{sEx}, s{sXS}, {TF}')
        k(f'v_mov_b32 v4, s{sTag0}'); k(f'v_mov_b32 v5, s{sTag1}'); k('v_mov_b32 v3, 0')
        k('s_waitcnt vmcnt(0)'); k('s_barrier')
        k(f's_cmp_lg_u32 s{sWave}, 1'); k(f's_cbranch_scc1 {t}_NF')
        k('s_mov_b64 exec, 1')
        dual(lambda fl: k(f'buffer_store_dwordx2 v[4:5], v3, s[{sF}:{sF+3}], s{sEx} offen{fl}'), t + '_FS')
        k('s_mov_b64 exec, -1')
        k.label(f'{t}_NF')
    c.slice_loads = slice_loads; c.tok0_loads = tok0_loads; c.xcc_publish = xcc_publish; c.slice_finish = slice_finish
    uid = [0]
    SL = int(opts.get('sleep', 0))
    def poll(tag, soff, kmin, mask, vdst=vFl, sleep=0, voff=vHF):
        k(f's_cmp_lg_u32 s{sDead}, 0'); k(f's_cbranch_scc1 {tag}_X')
        k(f's_add_u32 s{sTK}, s{sTag0}, {kmin}')
        k(f's_mov_b32 s{sCnt}, 0')
        if mask == 'lo32': k('s_mov_b32 exec_hi, 0')
        else: k(f's_mov_b64 exec, {mask}')
        k.label(f'{tag}_L')
        k(f'buffer_load_dwordx2 {V(vdst,2)}, v{voff}, s[{sF}:{sF+3}], {soff} offen sc1')
        k('s_waitcnt vmcnt(0)')
        k(f'v_subrev_u32 v{vdst}, s{sTK}, v{vdst}')
        k(f'v_cmp_gt_u32 vcc, 64, v{vdst}')
        k(f'v_cmp_eq_u32 s[{sM2}:{sM2+1}], s{sTag1}, v{vdst+1}')
        k(f's_and_b64 vcc, vcc, s[{sM2}:{sM2+1}]')
        k('s_cmp_eq_u64 vcc, exec'); k(f's_cbranch_scc1 {tag}_D')
        if sleep: k(f's_sleep {sleep}')
        k(f's_add_u32 s{sCnt}, s{sCnt}, 1'); k(f's_cmp_lt_u32 s{sCnt}, {SPIN}'); k(f's_cbranch_scc1 {tag}_L')
        k(f's_mov_b32 s{sDead}, 1')
        k.label(f'{tag}_D')
        k('s_mov_b64 exec, -1')
        k.label(f'{tag}_X')
    def dual(fn, tag):
        k(f's_cmp_eq_u32 s{sMode}, 0'); k(f's_cbranch_scc1 {tag}_G')
        fn(''); k(f's_branch {tag}_J')
        k.label(f'{tag}_G'); fn(' sc1')
        k.label(f'{tag}_J')

    k('s_cmp_ge_u32 s2, 256'); k('s_cbranch_scc1 K_END')
    st.init(); st(0); st.clk(62)
    k('s_load_dwordx16 s[64:79], s[0:1], 0')
    k('s_load_dwordx8 s[80:87], s[0:1], 64')
    k('v_lshrrev_b32 v3, 6, v0'); k('v_and_b32 v1, 63, v0')
    k(f'v_readfirstlane_b32 s{sWave}, v3')
    k('v_lshlrev_b32 v2, 4, v1')
    k(f's_and_b32 s{sTmp2}, s2, 7'); k(f's_lshr_b32 s{sTmp}, s2, 3')
    k(f's_and_b32 s{sPart}, s{sTmp}, 7'); k(f's_lshr_b32 s{sTmp}, s{sTmp}, 3')
    k(f's_lshl_b32 s{sQuad}, s{sTmp2}, 2'); k(f's_add_u32 s{sQuad}, s{sQuad}, s{sTmp}')
    k(f's_lshl_b32 s{sXS}, s{sTmp2}, 5'); k(f's_lshl2_add_u32 s{sXS}, s{sPart}, s{sXS}'); k(f's_add_u32 s{sXS}, s{sXS}, s{sTmp}'); k(f's_lshl_b32 s{sXS}, s{sXS}, 6')
    k(f's_getreg_b32 s{sXcc}, hwreg(HW_REG_XCC_ID, 0, 4)')
    k(f's_mov_b32 s{sDead}, 0'); k(f's_mov_b32 s{sPQ}, {PF + 64*FS}')
    k(f's_mul_i32 s{sQoff}, s{sQuad}, {QS}'); k(f's_add_u32 s{sQoff}, s{sQoff}, {GOFF}')
    k(f's_mul_i32 s{sFillM}, s{sWave}, 10240')
    k(f's_lshl_b32 s{sSlotW}, s{sQuad}, 3'); k(f's_add_u32 s{sSlotR}, s{sSlotW}, s{sWave}'); k(f's_add_u32 s{sSlotW}, s{sSlotW}, s{sPart}')
    k(f's_lshl_b32 s{sSlotW}, s{sSlotW}, 6'); k(f's_lshl_b32 s{sSlotR}, s{sSlotR}, 6')
    k('s_waitcnt lgkmcnt(0)')
    k(f's_load_dword s{sNon}, s[86:87], {NONCE}')
    k(f's_mov_b64 s[{sWS}:{sWS+1}], s[86:87]')
    srd(k, sF, 86, 0, FREG); srd(k, sX, 64, 0, 2560000); srd(k, sT, 70, 0, 20000)
    k(f's_cmp_ge_u32 s2, {WG_M}'); k('s_cbranch_scc1 KA_W')
    k(f's_cmp_ge_u32 s2, {PBASE}'); k('s_cbranch_scc1 KA_P')
    make_tag(); xcc_publish()
    slice_loads()
    if int(opts.get('wpf', 1)):
        k(f's_lshr_b32 s{sTmp}, s2, 5'); k(f's_and_b32 s{sTmp2}, s2, 31'); k(f's_lshl_b32 s{sTmp2}, s{sTmp2}, 10')
        k('s_cmp_lt_u32 s2, 128'); k('s_cbranch_scc0 KA_NW'); k(f's_cmp_lg_u32 s{sWave}, 2'); k('s_cbranch_scc1 KA_NW')
        for m in range(1, 4):
            k(f's_cmp_eq_u32 s{sTmp}, {m}'); k(f's_cmov_b64 s[72:73], s[{72+2*m}:{73+2*m}]')
        srd(k, sT2, 72, 0, 32768)
        k(f'buffer_load_dwordx4 v[120:123], v2, s[{sT2}:{sT2+3}], s{sTmp2} offen')
        k.label('KA_NW')
    early_setup()
    k('s_branch KA_S')
    k.label('KA_W'); km_a.weights(c); k('s_branch KA_M')
    k.label('KA_P'); km_a.producer(c)
    slice_loads()
    k.label('KA_S')
    st(1)
    slice_finish('KS0')
    st(2)
    k.label('KA_M')
    srd(k, sGR, sWS, f's{sQoff}', 80000); srd(k, sGW, sWS, f's{sQoff}', 80000); srd(k, sH, sWS, HOFF, 8 * HSZ)
    def fill(tag):
        k(f's_add_u32 s{sTmp}, s{sFillM}, 4096'); k(f's_add_u32 s{sTmp2}, s{sFillM}, 8192')
        for so in (sFillM, sTmp):
            k(f's_mov_b32 m0, s{so}')
            for i in range(4):
                k(f'buffer_load_dwordx4 v2, s[{sGR}:{sGR+3}], s{so} offen offset:{1024*i} sc1 lds')
        k(f's_mov_b32 m0, s{sTmp2}')
        k(f's_cmp_eq_u32 s{sWave}, 7'); k(f's_cbranch_scc1 {tag}_7')
        k(f'buffer_load_dwordx4 v2, s[{sGR}:{sGR+3}], s{sTmp2} offen sc1 lds')
        k(f'buffer_load_dwordx4 v2, s[{sGR}:{sGR+3}], s{sTmp2} offen offset:1024 sc1 lds')
        k(f's_branch {tag}_E')
        k.label(f'{tag}_7')
        k('s_mov_b64 exec, 0xff')
        k(f'buffer_load_dwordx4 v2, s[{sGR}:{sGR+3}], s{sTmp2} offen sc1 lds')
        k('s_mov_b64 exec, -1')
        k.label(f'{tag}_E')
    tok0_loads()
    k(f'v_lshrrev_b32 v3, 2, v{vGA}')
    for i in range(3): k(f'buffer_load_ushort v{vD+i}, v3, s[{sT}:{sT+3}], 0 offen offset:{1024*i}')
    if int(opts.get('gtouch', 1)):
        k(f's_sub_u32 s{sTmp}, s{sWave}, 1'); k(f's_cmp_ge_u32 s{sTmp}, 2'); k('s_cbranch_scc1 KB_NT')
        srd(k, sT2, sWS, f's{sQoff}', 3 * GSZ)
        k(f's_mul_i32 s{sTmp}, s{sWave}, {GSZ}'); k(f's_mul_i32 s{sTmp2}, s{sPart}, 10240'); k(f's_add_u32 s{sTmp}, s{sTmp}, s{sTmp2}')
        k('v_lshlrev_b32 v3, 7, v1'); k(f's_add_u32 s{sTmp2}, s{sTmp}, 2048')
        k(f'buffer_load_dword v125, v3, s[{sT2}:{sT2+3}], s{sTmp} offen'); k(f'buffer_load_dword v126, v3, s[{sT2}:{sT2+3}], s{sTmp2} offen')
        k.label('KB_NT')
    st(3)
    k('s_cmp_ge_u32 s2, 157'); k('s_cbranch_scc1 KI')
    vC, vO = 64, 72
    k('v_lshrrev_b32 v4, 3, v0'); k('v_and_b32 v5, 7, v0')
    k(f'v_mul_u32_u24 v4, {CSTR}, v4'); k(f'v_lshl_add_u32 v{vAd}, v5, 4, v4')
    k('v_lshrrev_b32 v4, 4, v0'); k('v_and_b32 v5, 15, v0')
    k(f'v_mul_u32_u24 v4, {CSTR}, v4'); k(f'v_lshl_add_u32 v{vAd+1}, v5, 3, v4')
    k(f's_cmp_lg_u32 s{sWave}, 0'); k('s_cbranch_scc1 KB_PW')
    k(f's_mov_b32 s{sTmp}, {PF}'); k(f's_mov_b32 s{sCnt}, 0')
    k(f'v_min_u32 v3, {(NPROD-65)*FS}, v{vHF}')
    k.label('KB_PP')
    k(f'buffer_load_dwordx2 {V(vFl,2)}, v{vHF}, s[{sF}:{sF+3}], s{sTmp} offen sc1')
    k(f'buffer_load_dwordx2 {V(vGp,2)}, v3, s[{sF}:{sF+3}], s{sTmp} offen offset:{64*FS - 1} sc1' if False else
      f'buffer_load_dwordx2 {V(vGp,2)}, v3, s[{sF}:{sF+3}], s{sPQ} offen sc1')
    k('s_waitcnt vmcnt(0)')
    k(f'v_xor_b32 v{vFl}, s{sTag0}, v{vFl}'); k(f'v_xor_b32 v{vGp}, s{sTag0}, v{vGp}')
    k(f'v_xor_b32 v{vFl+1}, s{sTag1}, v{vFl+1}'); k(f'v_xor_b32 v{vGp+1}, s{sTag1}, v{vGp+1}')
    k(f'v_or_b32 v{vFl}, v{vFl}, v{vGp}'); k(f'v_or_b32 v{vFl+1}, v{vFl+1}, v{vGp+1}')
    k(f'v_cmp_lt_u32 vcc, 1, v{vFl}'); k(f'v_cmp_ne_u32 s[{sM2}:{sM2+1}], 0, v{vFl+1}')
    k(f's_or_b64 vcc, vcc, s[{sM2}:{sM2+1}]'); k('s_cbranch_vccz KB_PD')
    if SL: k(f's_sleep {SL}')
    k(f's_add_u32 s{sCnt}, s{sCnt}, 1'); k(f's_cmp_lt_u32 s{sCnt}, {SPIN}'); k('s_cbranch_scc1 KB_PP')
    k(f's_mov_b32 s{sDead}, 1')
    k.label('KB_PD')
    k(f'v_cmp_ne_u32 vcc, 0, v{vFl}'); k('s_cmp_lg_u64 vcc, 0'); k(f's_cselect_b32 s{sSlow}, 63, 0')
    k.label('KB_PW')
    k(f's_mul_i32 s{sTmp}, s2, {CROW}'); k(f's_add_u32 s{sTmp}, s{sTmp}, {CELL}'); k(f's_add_u32 s{sTmp2}, s{sTmp}, {64*CSTR}')
    k(f'v_mov_b32 v{vC+4}, 0xff9f7fff'); k(f'v_mov_b32 v{vC+5}, 0xff9f7fff')
    k(f'v_cmp_gt_u32 vcc, {(NPROD-64)*16}, v0'); k(f's_mov_b64 s[{sEx}:{sEx+1}], vcc')
    k('s_barrier')
    st(4)
    k(f'buffer_load_dwordx4 {V(vC,4)}, v{vAd}, s[{sF}:{sF+3}], s{sTmp} offen sc1')
    k(f's_mov_b64 exec, s[{sEx}:{sEx+1}]')
    k(f'buffer_load_dwordx2 {V(vC+4,2)}, v{vAd+1}, s[{sF}:{sF+3}], s{sTmp2} offen sc1')
    k('s_mov_b64 exec, -1')
    vBit, vSl, vBk, vLa6 = 80, 88, 96, 104
    k(f's_mul_i32 s{sTmp3}, s{sWave}, 1536'); k(f's_add_u32 s{sTmp3}, s{sTmp3}, {LST}')
    k(f's_mov_b32 s{sTmp2}, s{sTmp3}')
    k(f'v_mov_b32 v6, {LM >> 11}'); k('v_mov_b32 v7, 1'); k('v_mov_b32 v5, 0x7c'); k('v_mov_b32 v112, 0x7fff8')
    for e in range(6):
        if e in (0, 4): k(f's_waitcnt vmcnt({1 if e == 0 else 0})')
        if e == 0: st(5)
        k(f'v_lshrrev_b32 v3, 16, v{vC+e}'); k(f'v_alignbit_b32 v{vLa6+e}, v6, v{vC+e}, 21'); k(f'v_lshlrev_b32 v{vBit+e}, v3, v7')
        k(f'v_and_b32 v{vLa6+e}, -4, v{vLa6+e}')
        k(f'ds_or_rtn_b32 v{vO+e}, v{vLa6+e}, v{vBit+e}')
    for e in range(6):
        k(f'v_alignbit_b32 v{vSl+e}, v7, v{vC+e}, 15')
        k(f'v_lshlrev_b32 v3, 2, v{vC+e}'); k(f'v_bfi_b32 v{vBk+e}, v5, v3, v{vLa6+e}')
    for e in range(6):
        k(f's_waitcnt lgkmcnt({5 - e + 3 * e if 5 - e + 3 * e < 15 else 15})')
        k(f'v_and_b32 v3, v{vO+e}, v{vBit+e}'); k('v_cmp_ne_u32 vcc, 0, v3')
        k(f'v_mbcnt_lo_u32_b32 v3, vcc_lo, 0'); k(f'v_cndmask_b32 v{vSl+e}, v{vSl+e}, v112, vcc')
        k(f'v_mbcnt_hi_u32_b32 v3, vcc_hi, v3'); k(f'v_cndmask_b32 v{vBit+e}, v{vBit+e}, 0, vcc')
        k(f'ds_write_b16 v{vSl+e}, v{vC+e}')
        k(f'v_lshl_add_u32 v3, v3, 2, s{sTmp3}')
        k(f'ds_or_b32 v{vBk+e}, v{vBit+e} offset:256')
        k(f'v_cndmask_b32 v{vSl+e}, v112, v3, vcc')
        k(f's_bcnt1_i32_b64 s{sTmp}, vcc')
        k(f'ds_write_b32 v{vSl+e}, v{vC+e}')
        k(f's_lshl2_add_u32 s{sTmp3}, s{sTmp}, s{sTmp3}')
    vE, vLa, vBa, vLm, vBm, vFr, vR, vB2, vRow, vFb = 64, 65, 66, 67, 68, 69, 70, 71, 72, 73
    def p2_head():
        k(f'v_lshl_add_u32 v3, v1, 2, s{sTmp2}')
        k(f'v_cmp_gt_u32 s[{sMk}:{sMk+1}], s{sTmp3}, v3')
        k(f'ds_read_b32 v{vE}, v3')
        k(f's_add_u32 s{sTmp2}, s{sTmp2}, 256')
        k('s_waitcnt lgkmcnt(0)')
        k(f'v_alignbit_b32 v{vLa}, v6, v{vE}, 21'); k(f'v_and_b32 v{vLa}, -4, v{vLa}')
        k(f'v_lshlrev_b32 v3, 2, v{vE}'); k(f'v_bfi_b32 v{vBa}, v5, v3, v{vLa}')
        k(f'v_alignbit_b32 v{vRow}, v7, v{vE}, 15'); k(f'v_and_b32 v{vRow}, {hx(~255)}, v{vRow}')
        k(f'v_lshrrev_b32 v{vR}, 5, v{vE}'); k(f'v_mul_u32_u24 v{vR}, 7, v{vR}'); k(f'v_add_u32 v{vR}, v{vR}, v1')
    p2_head()
    k('s_barrier')
    st(6)
    k.label('KB_P2')
    k(f's_mov_b64 exec, s[{sMk}:{sMk+1}]'); k('s_cbranch_execz KB_P2E')
    k(f'ds_read_b32 v{vLm}, v{vLa}')
    k(f'ds_read_b32 v{vBm}, v{vBa} offset:256')
    k(f's_mov_b32 s{sCnt}, 0')
    k.label('KB_P2R')
    k('s_waitcnt lgkmcnt(0)')
    k(f'v_or_b32 v{vFr}, v{vLm}, v{vBm}')
    k(f'v_cmp_eq_u32 vcc, -1, v{vFr}'); k(f'v_cndmask_b32 v{vFr}, v{vFr}, v{vLm}, vcc'); k(f'v_cndmask_b32 v{vFb}, -1, 0, vcc')
    k(f'v_not_b32 v{vFr}, v{vFr}')
    k(f'v_alignbit_b32 v3, v{vFr}, v{vFr}, v{vR}')
    k(f'v_cmp_eq_u32 vcc, 0, v{vFr}'); k('s_cbranch_vccnz KB_P2O')
    k.label('KB_P2N')
    k('v_ffbl_b32 v3, v3'); k(f'v_add_u32 v3, v3, v{vR}')
    k(f'v_lshlrev_b32 v{vB2}, v3, v7')
    k(f'ds_or_rtn_b32 v{vLm}, v{vLa}, v{vB2}')
    k(f'ds_or_rtn_b32 v{vBm}, v{vBa}, v{vB2} offset:256')
    k('v_and_b32 v3, 31, v3')
    k(f'v_lshl_add_u32 v3, v3, 1, v{vRow}'); k(f'v_add_u32 v{vR}, 11, v{vR}')
    k(f's_add_u32 s{sCnt}, s{sCnt}, 1'); k(f's_cmp_le_u32 s{sCnt}, {int(opts.get("retry", 3))}'); k(f's_cselect_b32 s{sTmp}, -1, 0')
    k('s_waitcnt lgkmcnt(0)')
    k(f'v_and_b32 v4, s{sTmp}, v{vBm}'); k(f'v_and_b32 v4, v4, v{vFb}'); k(f'v_or_b32 v4, v4, v{vLm}')
    k(f'v_and_b32 v4, v4, v{vB2}'); k('v_cmp_eq_u32 vcc, 0, v4')
    k(f'v_and_b32 v4, v{vLm}, v{vB2}'); k(f'v_cmp_eq_u32 s[{sM2}:{sM2+1}], 0, v4')
    k(f's_and_saveexec_b64 s[{sEx}:{sEx+1}], vcc')
    k(f'ds_write_b16 v3, v{vE}')
    k(f's_andn2_b64 exec, s[{sM2}:{sM2+1}], vcc')
    k(f'ds_xor_b32 v{vLa}, v{vB2}')
    k(f's_andn2_b64 exec, s[{sEx}:{sEx+1}], vcc'); k('s_cbranch_execnz KB_P2R')
    k.label('KB_P2X')
    k('s_mov_b64 exec, -1')
    k(f's_cmp_ge_u32 s{sTmp2}, s{sTmp3}'); k('s_cbranch_scc1 KB_P2E')
    p2_head()
    k('s_branch KB_P2')
    k.label('KB_P2O')
    k(f's_and_saveexec_b64 s[{sEx}:{sEx+1}], vcc')
    k(f'ds_add_rtn_u32 v4, v{vLa}, v7 offset:512'); k('s_waitcnt lgkmcnt(0)')
    k(f'v_add_u32 v4, {S0}, v4'); k(f'v_cmp_gt_u32 s[{sM2}:{sM2+1}], {CAP}, v4')
    k(f'v_lshl_add_u32 v4, v4, 1, v{vRow}')
    k(f's_mov_b64 exec, s[{sM2}:{sM2+1}]')
    k(f'ds_write_b16 v4, v{vE}')
    k(f's_andn2_b64 exec, s[{sEx}:{sEx+1}], vcc'); k('s_cbranch_execnz KB_P2N')
    k('s_branch KB_P2X')
    k.label('KB_P2E')
    k('s_mov_b64 exec, -1')
    k('s_waitcnt lgkmcnt(0)'); k('s_barrier')
    st(7)
    k(f's_cmp_ge_u32 s{sWave}, 5'); k('s_cbranch_scc1 KB_EF')
    k(f's_lshl_b32 s{sTmp}, s{sWave}, 4'); k(f's_add_u32 s{sTmp}, s{sTmp}, {IMG}')
    k(f'v_lshl_add_u32 v3, v1, 8, s{sTmp}'); k('ds_read_b128 v[64:67], v3')
    k(f'v_lshlrev_b32 v4, 2, v1'); k(f'v_add_u32 v4, {LM}, v4'); k('ds_read_b32 v5, v4 offset:512')
    k(f's_mul_i32 s{sTmp}, s2, 5120'); k(f's_lshl_b32 s{sTmp2}, s{sWave}, 10'); k(f's_add_u32 s{sTmp}, s{sTmp}, s{sTmp2}')
    k(f's_add_u32 s{sTmp}, s{sTmp}, {ELL}')
    k('s_waitcnt lgkmcnt(1)')
    k(f'buffer_store_dwordx4 v[64:67], v2, s[{sF}:{sF+3}], s{sTmp} offen sc1')
    k('s_waitcnt lgkmcnt(0)')
    allreduce16(k, 'v_max_u32', 5); xrow_reduce(k, 'v_max_u32', 5, 4)
    k(f'v_readfirstlane_b32 s{sTmp2}, v5')
    k(f's_add_u32 s{sTmp2}, s{sTmp2}, {S0}'); k(f's_cmp_gt_u32 s{sTmp2}, {CAP}'); k(f's_cmov_b32 s{sTmp2}, 63')
    k(f's_or_b32 s{sTmp2}, s{sTmp2}, s{sSlow}')
    k(f's_lshl_b32 s{sTmp}, s2, 6'); k(f's_add_u32 s{sTmp}, s{sTmp}, {BF}')
    k.label('KB_EF')
    k('s_waitcnt vmcnt(0)'); k('s_barrier')
    km_a.publish(c, sTmp, f's{sTmp2}', 'KB_BP')
    st(8)
    k.label('KI')
    k(f's_cmp_eq_u32 s{sWave}, 4'); k('s_cbranch_scc1 KI_NF')
    k(f's_and_b32 s{sTmp}, s{sXS}, {hx(~2047)}'); k(f's_add_u32 s{sTmp}, s{sTmp}, {TF}')
    poll('KB_TP', f's{sTmp}', 0, 'lo32', sleep=1)
    fill('KB_F')
    k(f's_cmp_lg_u32 s{sWave}, 5'); k('s_cbranch_scc1 KI_NF')
    k(f's_sub_u32 s{sFillM}, s{sFillM}, 10240')
    fill('KB_F2')
    k(f's_add_u32 s{sFillM}, s{sFillM}, 10240')
    k.label('KI_NF')
    BC = TOKB + 17408
    k(f'v_lshl_add_u32 v6, v1, 2, 0'); k(f'v_add_u32 v6, {BC}, v6')
    k(f's_cmp_lg_u32 s{sWave}, 4'); k('s_cbranch_scc1 KI_W')
    k(f's_mul_i32 s{sTmp}, s{sPart}, {20*FS}'); k(f's_add_u32 s{sTmp}, s{sTmp}, {BF}')
    k(f's_mov_b32 s{sEx}, 0xfffff'); k(f's_cmp_eq_u32 s{sPart}, 7'); k(f's_cmov_b32 s{sEx}, 0x1ffff'); k(f's_mov_b32 s{sEx+1}, 0')
    k(f'v_mov_b32 v{vFl}, 0')
    poll('KI_BP', f's{sTmp}', 0, f's[{sEx}:{sEx+1}]', sleep=SL)
    k(f'ds_write_b32 v6, v{vFl}'); k('s_waitcnt lgkmcnt(0)')
    k.label('KI_W')
    k('s_barrier')
    k(f'ds_read_b32 v{vFl}, v6'); k('s_waitcnt lgkmcnt(0)')
    st(9)
    k(f'v_cmp_lt_u32 vcc, {CAP}, v{vFl}'); k('s_cmp_lg_u64 vcc, 0'); k(f's_cselect_b32 s{sSlow}, 1, {force_slow}')
    k(f's_add_u32 s{sTmp}, s{sWave}, 8'); k(f's_add_u32 s{sTmp2}, s{sWave}, 16')
    k(f'v_readlane_b32 s{sSt}, v{vFl}, s{sWave}'); k(f'v_readlane_b32 s{sSt+1}, v{vFl}, s{sTmp}'); k(f'v_readlane_b32 s{sSt+2}, v{vFl}, s{sTmp2}')
    k(f's_cmp_lg_u32 s{sSlow}, 0')
    for i in range(3): k(f's_cmov_b32 s{sSt+i}, 0')
    k(f's_mul_i32 s{sTmp}, s{sPart}, 20'); k(f's_add_u32 s{sTmp}, s{sTmp}, s{sWave}'); k(f's_mul_i32 s{sTmp}, s{sTmp}, 5120')
    k(f's_add_u32 s{sTmp}, s{sTmp}, {ELL}')
    for i in range(3):
        k(f's_cmp_eq_u32 s{sSt+i}, 0'); k(f's_cbranch_scc1 KI_L{i}')
        for b in range(3):
            k(f'buffer_load_dwordx4 {V(vI+20*i+4*b,4)}, v2, s[{sF}:{sF+3}], s{sTmp} offen offset:{1024*b} sc1')
        k(f'buffer_load_dwordx4 {V(vI+20*i+12,4)}, v2, s[{sF}:{sF+3}], s{sTmp} offen offset:3072 sc1')
        k(f's_cmp_le_u32 s{sSt+i}, 32'); k(f's_cbranch_scc1 KI_L{i}')
        k(f's_add_u32 s{sTmp2}, s{sTmp}, 4096')
        k(f'buffer_load_dwordx4 {V(vI+20*i+16,4)}, v2, s[{sF}:{sF+3}], s{sTmp2} offen sc1')
        k.label(f'KI_L{i}')
        if i < 2: k(f's_add_u32 s{sTmp}, s{sTmp}, {8*5120}')
    k(f's_cmp_lt_u32 s{sWave}, 4'); k('s_cbranch_scc1 KI_N0')
    k(f's_cmp_lg_u32 s{sSlow}, 0'); k('s_cbranch_scc1 KI_N0')
    def tok0_write(t):
        k('v_and_b32 v3, 7, v1'); k('v_lshlrev_b32 v3, 3, v3'); k('v_lshrrev_b32 v4, 3, v1'); k('v_lshl_add_u32 v3, v4, 7, v3')
        k(f's_and_b32 s{sTmp}, s{sWave}, 3'); k(f's_mul_i32 s{sTmp}, s{sTmp}, {GSTR}'); k(f's_add_u32 s{sTmp}, s{sTmp}, {TOKB}')
        k(f'v_add_u32 v3, s{sTmp}, v3')
        for j in range(4):
            if j == 2: k(f's_cmp_lg_u32 s{sWave}, 4'); k(f's_cbranch_scc1 {t}')
            for h in range(2):
                k(f'ds_write_b64 v3, {V(vT0x+4*j+2*h,2)} offset:{(j//2)*4*GSTR + 1024*(j%2) + 64*h}')
        k.label(t)
    tok0_write('KI_T0')
    k.label('KI_N0')
    vLW, vH3 = 212, 248
    sKind = 64
    k('v_mov_b32 v5, 0x7fff8'); k('v_bfrev_b32 v6, 1')
    k(f's_mov_b32 s{sTmp}, 80000'); k(f's_cmp_ge_u32 s{sWave}, 4'); k(f's_cselect_b32 s{sTmp2}, 0, s{sTmp}')
    for i in range(3):
        k(f'v_add_u32 v3, {4096*i}, v{vGA}'); k(f'v_add_u32 v4, {i*64*2048}, v{vHA}')
        k(f'v_cmp_gt_u32 vcc, s{sTmp2 if i == 2 else sTmp}, v3')
        k(f'v_cndmask_b32 v{vLW+i}, v5, v3, vcc'); k(f'v_cndmask_b32 v{vH3+i}, v6, v4, vcc')
    k(f's_max_u32 s{sTmp}, s{sSt}, s{sSt+1}'); k(f's_max_u32 s{sTmp}, s{sTmp}, s{sSt+2}')
    k(f's_cmp_gt_u32 s{sTmp}, {S0}'); k(f's_cselect_b32 s{sKind}, 1, 0')
    k(f's_cmp_lg_u32 s{sSlow}, 0'); k(f's_cmov_b32 s{sKind}, 2')
    k(f's_mov_b32 s{sHo}, 0x7f000000')
    k(f's_mov_b32 s{sHop}, 1'); k(f's_mov_b32 s{sTk}, 1')
    vF8 = 222
    k(f'v_lshlrev_b32 v{vF8}, 3, v1')
    k(f's_lshl_b32 s{sTmp}, s{sWave}, 3'); k(f's_add_u32 s{sSlotW}, s{sSlotW}, s{sTmp}'); k(f's_add_u32 s{sSlotW}, s{sSlotW}, {HOPF}')
    k(f's_add_u32 s{sSlotR}, s{sSlotR}, {HOPF}')
    k(f's_lshl_b32 s{sHFW}, s{sPart}, 5'); k(f's_add_u32 s{sHFW}, s{sHFW}, s{sQuad}'); k(f's_lshl_b32 s{sHFW}, s{sHFW}, 6')
    k(f's_add_u32 s{sHFW}, s{sHFW}, {HF}')
    k(f's_lshr_b32 s{sHFR}, s2, 5'); k(f's_lshl_b32 s{sHFR}, s{sHFR}, 11'); k(f's_add_u32 s{sHFR}, s{sHFR}, {HF - 256*FS}')
    k(f's_mov_b32 s{sChk}, 0')
    k(f's_and_b32 s{sTmp}, s{sWave}, 3')
    k(f's_mul_i32 s{sTokG}, s2, 5'); k(f's_add_u32 s{sTokG}, s{sTokG}, s{sTmp}'); k(f's_lshl_b32 s{sTokG}, s{sTokG}, 11')
    k(f's_mul_i32 s{sTokL}, s{sTmp}, {GSTR}')
    k(f's_cmp_lt_u32 s{sWave}, 4'); k(f's_cmov_b32 s{sTk}, 8')
    k('s_cmp_ge_u32 s2, 250'); k(f's_cmov_b32 s{sTk}, 8')
    k(f'v_mov_b32 v{vFl}, 0'); k(f'v_mov_b32 v{vFl+1}, 0')
    for r in range(12): k(f'v_mov_b32 v{vAcc+r}, 0')
    def set_gw():
        k(f's_and_b32 s{sTmp}, s{sHop}, 1'); k(f's_add_u32 s{sTmp}, s{sTmp}, 1'); k(f's_add_u32 s{sTmp2}, s{sHop}, 2')
        k(f's_cmp_eq_u32 s{sMode}, 0'); k(f's_cmov_b32 s{sTmp}, s{sTmp2}')
        k(f's_mul_i32 s{sTmp}, s{sTmp}, {GSZ}'); k(f's_add_u32 s{sTmp}, s{sTmp}, s{sQoff}')
        k(f's_add_u32 s{sGW}, s{sWS}, s{sTmp}'); k(f's_addc_u32 s{sGW+1}, s{sWS+1}, 0')
    set_gw()
    k('s_waitcnt vmcnt(0) lgkmcnt(0)')
    k(f's_cmp_lg_u32 s{sSlow}, 0'); k('s_cbranch_scc1 KI_NX')
    for i in range(3):
        if i == 2: k(f's_cmp_eq_u32 s{sSt+2}, 0'); k('s_cbranch_scc1 KI_NX')
        for s_ in range(S0):
            k(f'v_lshlrev_b32_sdwa v{vXA+S0*i+s_}, 3, v{vI+20*i+s_//2} dst_sel:DWORD dst_unused:UNUSED_PAD src0_sel:DWORD src1_sel:WORD_{s_%2}')
    k.label('KI_NX')
    for i in range(3):
        k(f'v_lshlrev_b32 v{vD+i}, 16, v{vD+i}'); k(f'v_mul_f32 v{vD2+i}, v{vD+i}, v{vD+i}')
    if int(opts.get('hprio', 1)):
        k(f's_cmp_lt_u32 s{sWave}, 4'); k('s_cbranch_scc1 KI_NP'); k('s_setprio 1'); k.label('KI_NP')
    k('s_barrier')
    hmap = opts.get('hs', '012345')
    def hst(j):
        j = hmap.find(str(j))
        if st.on and j >= 0:
            k(f's_mul_i32 s{sSI}, s{sHop}, 6'); k(f's_add_u32 m0, s{sSI}, {4+j}'); k('s_nop 3'); st('m0')
    def tok_dma():
        uid[0] += 1; t = f'KTD{uid[0]}'
        k(f's_mul_i32 s{sTmp}, s{sTk}, {HSZ}'); k(f's_add_u32 s{sTmp}, s{sTmp}, s{sTokG}')
        k(f's_mul_i32 s{sTmp2}, s{sTk}, {TSTR}'); k(f's_add_u32 s{sTmp2}, s{sTmp2}, {TOKB}')
        k(f's_cmp_eq_u32 s{sTk}, 7'); k(f's_cmov_b32 s{sTmp2}, {T7B}')
        k(f's_add_u32 m0, s{sTmp2}, s{sTokL}')
        k(f's_add_u32 s{sTk}, s{sTk}, 1')
        k(f'buffer_load_dwordx4 v2, s[{sH}:{sH+3}], s{sTmp} offen sc1 lds')
        k(f'buffer_load_dwordx4 v2, s[{sH}:{sH+3}], s{sTmp} offen offset:1024 sc1 lds')
        k(f's_cmp_lg_u32 s{sWave}, 4'); k(f's_cbranch_scc1 {t}')
        k(f's_add_u32 m0, s{sTmp2}, {4*GSTR}'); k(f's_add_u32 s{sTmp}, s{sTmp}, 8192')
        k(f'buffer_load_dwordx4 v2, s[{sH}:{sH+3}], s{sTmp} offen sc1 lds')
        k(f'buffer_load_dwordx4 v2, s[{sH}:{sH+3}], s{sTmp} offen offset:1024 sc1 lds')
        k.label(t)
    def h_store(i, so=sHo):
        k(f'buffer_store_dwordx2 {V(vHp+2*i,2)}, v{vH3+i}, s[{sH}:{sH+3}], s{so} offen sc1')
    def scale(acc, d, dst, tmp):
        for r in range(4): k(f'v_mul_f32 v{tmp+r}, v{acc+r}, v{d}')
        k(f'v_cvt_pk_bf16_f32 v{dst}, v{tmp}, v{tmp+1}'); k(f'v_cvt_pk_bf16_f32 v{dst+1}, v{tmp+2}, v{tmp+3}')
    def epi(i, var):
        acc = vAcc + 4 * i
        if var == '7':
            scale(acc, vD + i, vG3 + 2 * i, 4)
            k(f'buffer_store_dwordx2 {V(vG3+2*i,2)}, v{vH3+i}, s[{sH}:{sH+3}], s{sHo+1} offen sc1')
        else:
            scale(acc, vD2 + i, vG3 + 2 * i, 4)
            k(f'buffer_store_dwordx2 {V(vG3+2*i,2)}, v{vLW+i}, s[{sGW}:{sGW+3}], 0 offen{" sc1" if var == "G" else ""}')
    vGB = 224; DP = int(opts.get('depth', 3))
    def issue(i, gi, slot):
        b = vGB + 8 * slot; vi = vI + 20 * i
        if 4 * gi >= S0:
            for j in range(4):
                s_ = 4 * gi + j
                k(f'v_lshlrev_b32_sdwa v{vAd+j}, 3, v{vi+s_//2} dst_sel:DWORD dst_unused:UNUSED_PAD src0_sel:DWORD src1_sel:WORD_{s_%2}')
        for j in range(4): k(f'ds_read_b64 {V(b+2*j,2)}, v{vAd+j if 4*gi >= S0 else vXA+S0*i+4*gi+j}')
    def acc2(i, slot):
        k(f'v_smfmac_f32_16x16x64_bf16 {V(vAcc+4*i,4)}, {V(vSel,4)}, {V(vGB+8*slot,8)}, v{vSi}')

    k(f's_mov_b32 s{sHo+1}, {7*HSZ}')
    k.label('KH')
    hst(0)
    k(f's_cmp_lg_u32 s{sKind}, 0'); k('s_cbranch_scc1 KH_SPEC')
    k.label('KH_MAIN')
    k(f's_cmp_eq_u32 s{sHop}, 7'); k('s_cbranch_scc1 KH_M7')
    k(f's_cmp_eq_u32 s{sMode}, 0'); k('s_cbranch_scc1 KH_MG')
    G = S0 // 4
    items = [(i, g) for i in range(3) for g in range(G)]
    def main(var):
        for n in range(DP - 1): issue(*items[n], n)
        for n, (i, g) in enumerate(items):
            if n == 2 * G - (DP - 1):
                k(f's_cmp_eq_u32 s{sSt+2}, 0'); k(f's_cbranch_scc1 KH_TWO{var}')
            if n + DP - 1 < len(items): issue(*items[n + DP - 1], (n + DP - 1) % DP)
            k(f's_waitcnt lgkmcnt({4 * min(DP - 1, len(items) - 1 - n)})')
            acc2(i, n % DP)
            if i == 0 and g in (0, 2, 4): h_store(g // 2)
            if i == 1 and g == 2:
                k(f's_cmp_eq_u32 s{sChk}, 0'); k(f's_cbranch_scc1 KH_NCK{var}')
                k(f's_mov_b32 s{sChk}, 0')
                k('s_waitcnt vmcnt(4)')
                k(f'v_cmp_eq_u32 vcc, s{sTag0}, v{vFl}')
                k(f'v_cmp_eq_u32 s[{sM2}:{sM2+1}], s{sTag1}, v{vFl+1}'); k(f's_and_b64 vcc, vcc, s[{sM2}:{sM2+1}]')
                k('s_cmp_eq_u32 vcc_lo, -1'); k(f's_cbranch_scc0 KH_NCK{var}')
                tok_dma()
                k.label(f'KH_NCK{var}')
            if g == G - 1: hst('abc'[i])
            if i > 0 and g == 1: epi(i - 1, var)
        epi(2, var)
        k('s_branch KH_GD')
        k.label(f'KH_TWO{var}')
        for n in range(2 * G - (DP - 1), 2 * G):
            k(f's_waitcnt lgkmcnt({4 * (2 * G - 1 - n)})'); acc2(1, n % DP)
        epi(1, var)
    main('L'); k('s_branch KH_GD')
    k.label('KH_M7'); main('7'); k('s_branch KH_GD')
    k.label('KH_MG'); main('G')
    k.label('KH_GD')
    hst(1)
    k(f's_mov_b32 s{sGR}, s{sGW}'); k(f's_mov_b32 s{sGR+1}, s{sGW+1}')
    k(f's_add_u32 s{sCnt}, s{sTag0}, s{sHop}')
    k(f'v_mov_b32 v4, s{sCnt}'); k(f'v_mov_b32 v5, s{sTag1}'); k('v_mov_b32 v3, 0')
    k('s_waitcnt vmcnt(0)'); hst(2)
    k(f's_cmp_eq_u32 s{sHop}, 7'); k('s_cbranch_scc1 KT')
    k('s_mov_b64 exec, 1')
    dual(lambda fl: k(f'buffer_store_dwordx2 v[4:5], v3, s[{sF}:{sF+3}], s{sSlotW} offen{fl}'), 'KH_HFS')
    k('s_mov_b64 exec, -1')
    k('s_barrier'); hst(3)
    for i in range(3): k(f'ds_write_b64 v{vLW+i}, {V(vG3+2*i,2)}')
    k(f's_cmp_eq_u32 s{sWave}, s{sPart}'); k('s_cbranch_scc1 KH_OWN')
    poll('KH_HP', f's{sSlotR}', f's{sHop}', '0xff', vdst=vGp, voff=vF8)
    hst(4)
    fill('KH_F')
    k.label('KH_OWN')
    for i in range(3): scale(vAcc + 4 * i, vD + i, vHp + 2 * i, 4)
    for r in range(12): k(f'v_mov_b32 v{vAcc+r}, 0')
    k(f's_mul_i32 s{sHo}, s{sHop}, {HSZ}')
    k(f's_add_u32 s{sHop}, s{sHop}, 1')
    set_gw()
    k(f'v_mov_b32 v4, s{sTag0}'); k(f'v_mov_b32 v5, s{sTag1}'); k(f'v_mov_b32 v{vFl+1}, 0')
    k('s_waitcnt vmcnt(0) lgkmcnt(0)')
    if st.on: k(f's_sub_u32 s{sHop}, s{sHop}, 1'); hst(5); k(f's_add_u32 s{sHop}, s{sHop}, 1')
    k(f's_cmp_lt_u32 s{sWave}, 4'); k('s_cbranch_scc1 KH_NOT')
    k(f's_cmp_lg_u32 s{sWave}, 7'); k('s_cbranch_scc1 KH_NHF')
    k(f's_cmp_lt_u32 s{sHop}, 3'); k('s_cbranch_scc1 KH_NHF')
    k('s_mov_b64 exec, 1')
    k(f'buffer_store_dwordx2 v[4:5], v3, s[{sF}:{sF+3}], s{sHFW} offen sc1')
    k('s_mov_b64 exec, -1')
    k(f's_add_u32 s{sHFW}, s{sHFW}, {256*FS}')
    k.label('KH_NHF')
    k(f's_cmp_lg_u32 s{sWave}, 6'); k('s_cbranch_scc1 KH_NWP')
    k(f's_cmp_lg_u32 s{sHop}, 3'); k('s_cbranch_scc1 KH_NWP')
    k(f's_mov_b32 s{sTmp}, {WF}')
    poll('KH_WP', f's{sTmp}', 0, '3', vdst=vGp)
    k.label('KH_NWP')
    k(f's_add_u32 s{sTmp}, s{sTk}, 3'); k(f's_cmp_gt_u32 s{sTmp}, s{sHop}'); k('s_cbranch_scc1 KH_NOT')
    k(f's_cmp_lg_u32 s{sSlow}, 0'); k('s_cbranch_scc1 KH_NOT')
    k(f's_mul_i32 s{sTmp}, s{sTk}, {256*FS}'); k(f's_add_u32 s{sTmp}, s{sTmp}, s{sHFR}')
    k('s_mov_b32 exec_hi, 0')
    k(f'buffer_load_dwordx2 {V(vFl,2)}, v{vHF}, s[{sF}:{sF+3}], s{sTmp} offen sc1')
    k('s_mov_b64 exec, -1')
    k(f's_mov_b32 s{sChk}, 1')
    k.label('KH_NOT')
    k('s_barrier')
    k('s_branch KH')
    k.label('KH_SPEC')
    k(f's_cmp_eq_u32 s{sKind}, 2'); k('s_cbranch_scc1 KH_SLOW')
    for i in range(3):
        for g in range(G, CAP // 4):
            k(f's_cmp_le_u32 s{sSt+i}, {4*g}'); k(f's_cbranch_scc1 KX{i}')
            issue(i, g, 0); k('s_waitcnt lgkmcnt(0)'); acc2(i, 0)
        k.label(f'KX{i}')
    k('s_branch KH_MAIN')

    k.label('KH_SLOW')
    ACC = TOKB
    k('s_load_dwordx4 s[84:87], s[0:1], 8')
    for i in range(3): h_store(i)
    k(f'v_lshlrev_b32 v6, 4, v0'); k(f'v_add_u32 v6, {ACC}, v6')
    for r in range(4): k(f'v_mov_b32 v{vBuf+r}, 0')
    for n in range(3): k(f'ds_write_b128 v6, {V(vBuf,4)} offset:{8192*n}')
    k(f's_mul_i32 s{sTmp3}, s{sPart}, 1280')
    k('v_lshlrev_b32 v7, 2, v0')
    k(f's_mov_b32 s{sCnt}, 0')
    k('s_waitcnt lgkmcnt(0)')
    srd(k, sT, 84, 0, 640000); srd(k, sT2, 86, 0, 640000)
    k('s_barrier')
    k.label('KS_L')
    k(f'buffer_load_dword v{vBuf}, v7, s[{sT2}:{sT2+3}], s{sCnt} offen')
    k(f'buffer_load_dword v{vBuf+1}, v7, s[{sT}:{sT+3}], s{sCnt} offen')
    k(f'v_add_u32 v3, s{sCnt}, v7')
    k(f'v_cmp_gt_u32 s[{sEx}:{sEx+1}], s{sT+2}, v3')
    k('s_waitcnt vmcnt(0)')
    k(f'v_subrev_u32 v{vBuf}, s{sTmp3}, v{vBuf}')
    k(f'v_cmp_gt_u32 vcc, 1280, v{vBuf}')
    k(f's_and_b64 exec, vcc, s[{sEx}:{sEx+1}]')
    k(f'v_lshlrev_b32 v{vBuf+1}, 3, v{vBuf+1}')
    k(f'ds_read_b64 {V(vBuf+2,2)}, v{vBuf+1}')
    k(f'v_lshlrev_b32 v{vBuf}, 4, v{vBuf}'); k(f'v_add_u32 v{vBuf}, {ACC}, v{vBuf}')
    k('s_waitcnt lgkmcnt(0)')
    k(f'v_lshlrev_b32 v{vBuf+4}, 16, v{vBuf+2}'); k(f'v_and_b32 v{vBuf+5}, 0xffff0000, v{vBuf+2}')
    k(f'v_lshlrev_b32 v{vBuf+6}, 16, v{vBuf+3}'); k(f'v_and_b32 v{vBuf+7}, 0xffff0000, v{vBuf+3}')
    for r in range(4): k(f'ds_add_f32 v{vBuf}, v{vBuf+4+r} offset:{4*r}')
    k('s_mov_b64 exec, -1')
    k(f's_add_u32 s{sCnt}, s{sCnt}, 2048'); k(f's_cmp_lt_u32 s{sCnt}, 640000'); k('s_cbranch_scc1 KS_L')
    k('s_waitcnt lgkmcnt(0)'); k('s_barrier')
    for i in range(3): k(f'ds_read_b128 {V(vAcc+4*i,4)}, v6 offset:{8192*i}')
    k('s_waitcnt lgkmcnt(0)')
    k(f's_cmp_eq_u32 s{sHop}, 7'); k('s_cbranch_scc1 KS_E7')
    for i in range(3): epi(i, 'G')
    k('s_branch KH_GD')
    k.label('KS_E7')
    for i in range(3): epi(i, '7')
    k('s_branch KH_GD')

    k.label('KT')
    k('s_barrier'); hst(3)
    k(f's_cmp_lg_u32 s{sWave}, 7'); k('s_cbranch_scc1 KT_NF')
    k(f'v_mov_b32 v4, s{sTag0}'); k(f's_add_u32 s{sHFW}, s{sHFW}, {256*FS}')
    k('s_mov_b64 exec, 1')
    k(f'buffer_store_dwordx2 v[4:5], v3, s[{sF}:{sF+3}], s{sHFW} offen sc1')
    k('s_mov_b64 exec, -1')
    k.label('KT_NF')
    k('s_cmp_ge_u32 s2, 250'); k('s_cbranch_scc1 K_FIN')
    def tail_early():
        k(f's_cmp_eq_u32 s{sSlow}, 0'); k('s_cbranch_scc1 KT_N0')
        tok0_write('KT_T0')
        k.label('KT_N0')
        k(f's_min_u32 s{sTmp}, s{sTk}, 5'); k(f's_mul_i32 s{sTmp}, s{sTmp}, {256*FS}'); k(f's_add_u32 s{sTmp}, s{sTmp}, s{sHFR}')
        k('v_mov_b32 v121, 0'); k('s_mov_b32 exec_hi, 0')
        k(f'buffer_load_dwordx2 v[120:121], v{vHF}, s[{sF}:{sF+3}], s{sTmp} offen sc1')
        k('s_mov_b64 exec, -1')
        k('s_waitcnt vmcnt(0)')
        k(f's_cmp_gt_u32 s{sTk}, 5'); k('s_cbranch_scc1 KT_N5')
        k(f'v_cmp_eq_u32 vcc, s{sTag0}, v120')
        k(f'v_cmp_eq_u32 s[{sM2}:{sM2+1}], s{sTag1}, v121'); k(f's_and_b64 vcc, vcc, s[{sM2}:{sM2+1}]')
        k('s_cmp_eq_u32 vcc_lo, -1'); k('s_cbranch_scc0 KT_N5')
        tok_dma()
        k.label('KT_N5')
    def tail_tokens():
        k(f's_add_u32 s{sHFR}, s{sHFR}, {7*256*FS}')
        poll('KT_HP', f's{sHFR}', 0, 'lo32', vdst=120, sleep=int(opts.get('tsleep', 0)))
        st(52)
        k.label('KT_T2')
        tok_dma()
        k(f's_cmp_lt_u32 s{sTk}, 8'); k('s_cbranch_scc1 KT_T2')
    c.tail_early = tail_early
    c.tail_tokens = tail_tokens
    transformer(c)
    k.label('K_FIN')
    k('s_cmp_lg_u32 s2, 0'); k('s_cbranch_scc1 K_FIN2')
    k(f's_cmp_lg_u32 s{sWave}, 4'); k('s_cbranch_scc1 K_FIN2')
    k(f'v_mov_b32 v4, s{sNon}'); k('v_mov_b32 v3, 0'); k('s_mov_b64 exec, 1')
    k(f'buffer_store_dword v4, v3, s[{sF}:{sF+3}], 0 offen')
    k.label('K_FIN2')
    if st.on:
        k('s_waitcnt vmcnt(0)'); st(61); st.clk(63)
        if opts.get('dbg'):
            wg, wv = opts['dbg'].split(',')
            k(f's_cmp_lg_u32 s2, {wg}'); k('s_cbranch_scc1 K_END'); k(f's_cmp_lg_u32 s{sWave}, {wv}'); k('s_cbranch_scc1 K_END')
            k('s_load_dwordx2 s[84:85], s[0:1], 80'); k('s_mov_b64 exec, -1')
            k('v_mov_b32 v3, 4096')
            for p, j in enumerate((1, 2, 3, 4, 5, 6, 7, 8, 9, 10, 16, 22, 46, 49, 54, 61)):
                k(f'v_mov_b32 v4, {4*p}'); k(f'v_cmp_eq_u32 vcc, {j}, v1'); k('v_cndmask_b32 v3, v3, v4, vcc')
            k('v_readlane_b32 s86, v127, 0'); k('v_subrev_u32 v127, s86, v127')
            k('s_waitcnt lgkmcnt(0)')
            srd(k, sT, 84, 0, 64)
            k(f'buffer_store_dword v127, v3, s[{sT}:{sT+3}], 0 offen')
        else: st.flush(sWS, sWave, 3)
    k.label('K_END')
    k('s_endpgm')
    return k

def build(opts):
    hdr = open('cdna_kernels/%s.s.ref' % NAME).read().split('\n')
    hdr = [l for l in hdr if l.startswith(';') and '@launch' not in l]
    k = gen(opts); k.finalize()
    nm = NAME + '_kernel'
    out = hdr + ['; @launch grid=(256,1,1) block=(512,1,1) lds=%d' % LDS_BYTES, '.amdgcn_target "amdgcn-amd-amdhsa--gfx950"', '.text',
                 '.globl %s' % nm, '.p2align 8', '.type %s,@function' % nm, nm + ':', k.text(),
                 '.section .rodata,"a"', '.p2align 6', desc(nm, 256, 100, 256)]
    return '\n'.join(out) + '\n'

if __name__ == '__main__':
    path = sys.argv[1]
    opts = dict(a.split('=') for a in sys.argv[2:] if '=' in a)
    open(path, 'w').write(build(opts)); print('wrote', path)
```
